```python
import torch

def _softmax(x, axis=-1):
    return torch.softmax(x, dim=axis)

def _gelu(x):
    return torch.nn.functional.gelu(x, approximate='tanh')

def _silu(x):
    return torch.nn.functional.silu(x)

def _sigmoid(x):
    return torch.sigmoid(x)

def _layernorm(x, axis=-1, eps=1e-05):
    m = x.mean(dim=axis, keepdim=True)
    v = x.var(dim=axis, keepdim=True, unbiased=False)
    return (x - m) / torch.sqrt(v + eps)

def _scatter_add(tgt, idx, src, axis=0):
    return tgt.clone().index_add_(axis, idx, src)

def _segment_sum(src, seg, n):
    out = torch.zeros((n,) + src.shape[1:], dtype=src.dtype)
    return out.index_add_(0, seg, src)

def _pad(x, pw):
    flat = tuple((v for pair in reversed(pw) for v in pair))
    return torch.nn.functional.pad(x, flat)
kernel_name = 'gated_mix__memory_aug_recurrent_mem_tr__glu_gated_reglu__prompt'

def setup_inputs():

    _w = lambda a: (lambda t: t.to(torch.bfloat16) if t.is_floating_point() else t)(torch.as_tensor(a))

    def _A_setup():
        B, S, Dm = (1, 2048, 512)
        H, Dh = (32, 128)
        M, seg = (8, 32)
        seg = min(seg, S)
        S = S // seg * seg
        return {'x': _w((lambda *s: torch.randn(*s, dtype=torch.bfloat16) * 0.05)(B, S, Dm)), 'mem0': _w((lambda *s: torch.randn(*s, dtype=torch.bfloat16) * 0.4)(B, M, Dm)), 'Wq': _w((lambda *s: torch.randn(*s, dtype=torch.bfloat16) * 6.4)(Dm, H, Dh) * Dm ** (-0.5)), 'Wk': _w((lambda *s: torch.randn(*s, dtype=torch.bfloat16) * 6.4)(Dm, H, Dh) * Dm ** (-0.5)), 'Wv': _w((lambda *s: torch.randn(*s, dtype=torch.bfloat16) * 0.4)(Dm, H, Dh) * Dm ** (-0.5)), 'Wo': _w((lambda *s: torch.randn(*s, dtype=torch.bfloat16) * 0.4)(H, Dh, Dm) * (H * Dh) ** (-0.5)), 'seg_len': seg}
    _A_in = _A_setup()

    def _B_setup():
        B, S, D, F = (1, 2048, 512, 1792)
        return {'x': _w((lambda *s: torch.randn(*s, dtype=torch.bfloat16) * 0.05)(B, S, D)), 'W_gate': _w((lambda *s: torch.randn(*s, dtype=torch.bfloat16) * 0.8)(D, F) * (2.0 / D) ** 0.5), 'W_up': _w((lambda *s: torch.randn(*s, dtype=torch.bfloat16) * 0.8)(D, F) * (2.0 / D) ** 0.5), 'W_down': _w((lambda *s: torch.randn(*s, dtype=torch.bfloat16) * 0.8)(F, D) * (1.0 / F) ** 0.5)}
    _B_in = _B_setup()
    return {'A_x': _A_in['x'], 'A_mem0': _A_in['mem0'], 'A_Wq': _A_in['Wq'], 'A_Wk': _A_in['Wk'], 'A_Wv': _A_in['Wv'], 'A_Wo': _A_in['Wo'], 'A_seg_len': _A_in['seg_len'], 'B_x': _B_in['x'], 'B_W_gate': _B_in['W_gate'], 'B_W_up': _B_in['W_up'], 'B_W_down': _B_in['W_down'], 'gate_w': _w((lambda *s: torch.randn(*s, dtype=torch.bfloat16) * 0.05)(512) * 16.0)}

def reference(A_x, A_mem0, A_Wq, A_Wk, A_Wv, A_Wo, A_seg_len, B_x, B_W_gate, B_W_up, B_W_down, gate_w):

    def _A_ref(x, mem0, Wq, Wk, Wv, Wo, seg_len):
        B, S, Dm = x.shape
        H, Dh = (Wq.shape[1], Wq.shape[2])
        M = mem0.shape[1]
        scale = Dh ** (-0.5)
        n_seg = S // seg_len
        L = M + seg_len
        idx = torch.arange(L)
        mask = (idx[:, None] < M) | (idx[:, None] >= idx[None, :])
        mem = mem0
        outs = []
        for s in range(n_seg):
            xs = x[:, s * seg_len:(s + 1) * seg_len, :].clone()
            h = torch.concatenate([mem, xs], axis=1)
            q = torch.einsum('btd,dhe->bhte', h, Wq)
            k = torch.einsum('btd,dhe->bhte', h, Wk)
            v = torch.einsum('btd,dhe->bhte', h, Wv)
            scores = torch.einsum('bhqe,bhke->bhqk', q, k) * scale
            scores = torch.where(mask[None, None], scores, -1000000000.0)
            p = _softmax(scores, axis=-1)
            o = torch.einsum('bhqk,bhke->bhqe', p, v)
            o = torch.einsum('bhte,hed->btd', o, Wo)
            mem = o[:, :M, :].clone()
            outs.append(o[:, M:, :])
        return torch.concatenate(outs, axis=1)

    def _B_ref(x, W_gate, W_up, W_down):
        gate = torch.einsum('bsd,df->bsf', x, W_gate)
        up = torch.einsum('bsd,df->bsf', x, W_up)
        gate = gate * (lambda x, dt: x.to(dt))(gate > 0, gate.dtype)
        h = gate * up
        return torch.einsum('bsf,fd->bsd', h, W_down)
    x = A_x
    g = _sigmoid((x * gate_w).sum(-1, keepdims=True))
    a = _A_ref(x, A_mem0, A_Wq, A_Wk, A_Wv, A_Wo, A_seg_len)
    b = _B_ref(x, B_W_gate, B_W_up, B_W_down)
    return g * a + (1 - g) * b
```

```python
import re

REG_RE = re.compile(r'\b([vas])\[(\d+):(\d+)\]|\b([vas])(\d+)\b|\b(vcc_lo|vcc_hi|vcc|exec_lo|exec_hi|exec|m0)\b')
TRANS = ('v_exp_f32', 'v_log_f32', 'v_rcp_f32', 'v_rsq_f32', 'v_sqrt_f32', 'v_sin_f32', 'v_cos_f32', 'v_rcp_iflag_f32')


def regs_of(op):
    out = []
    for m in REG_RE.finditer(op):
        if m.group(1):
            out += [(m.group(1), i) for i in range(int(m.group(2)), int(m.group(3)) + 1)]
        elif m.group(4):
            out.append((m.group(4), int(m.group(5))))
        else:
            n = m.group(6)
            if n.startswith('vcc'):
                out.append(('x', 'vcc'))
            elif n.startswith('exec'):
                out.append(('x', 'exec'))
            else:
                out.append(('x', 'm0'))
    return out


def split_ops(s):
    ops, depth, cur = [], 0, ''
    for ch in s:
        if ch in '[(':
            depth += 1
        elif ch in '])':
            depth -= 1
        if ch == ',' and depth == 0:
            ops.append(cur.strip())
            cur = ''
        else:
            cur += ch
    if cur.strip():
        ops.append(cur.strip())
    return ops


class Ins:
    __slots__ = ('text', 'mn', 'cls', 'w', 'r', 'passes', 'A', 'B', 'C', 'D', 'dpp', 'states', 'target', 'data', 'wide', 'lds')

    def __init__(self, text):
        self.text = text
        t = text.split(';')[0].strip()
        parts = t.split(None, 1)
        mn = parts[0]
        rest = parts[1] if len(parts) > 1 else ''
        self.mn = mn
        self.w, self.r = set(), set()
        self.passes = 0
        self.A = self.B = self.C = self.D = None
        self.dpp = False
        self.states = 1
        self.target = None
        self.data = set()
        self.wide = False
        self.lds = False
        ops = split_ops(rest)
        R = [regs_of(o.split(' ')[0]) if not o.startswith(('abs(', '-', '|')) else regs_of(o) for o in ops]
        if mn == 's_nop':
            self.cls = 'nop'
            self.states = int(rest, 0) + 1
        elif mn in ('s_waitcnt', 's_barrier', 's_sleep', 's_setprio', 's_endpgm', 'buffer_wbl2', 'buffer_inv'):
            self.cls = 'misc'
        elif mn.startswith('s_cbranch') or mn == 's_branch':
            self.cls = 'branch'
            self.target = rest.strip()
            if 'vcc' in mn:
                self.r.add(('x', 'vcc'))
        elif mn.startswith('v_mfma') or mn.startswith('v_smfmac'):
            self.cls = 'mfma'
            if '32x32' in mn:
                self.passes = 8
            elif '16x16' in mn:
                self.passes = 4
            else:
                raise ValueError(text)
            self.D = R[0]
            self.A = R[1]
            self.B = R[2]
            if mn.startswith('v_smfmac'):
                self.C = R[0]
                self.B = R[2] + R[3]
            else:
                self.C = R[3]
            self.w = set(self.D)
            self.r = set(self.A) | set(self.B) | set(self.C)
        elif mn.startswith('v_'):
            self.cls = 'trans' if any(mn.startswith(x) for x in TRANS) else 'valu'
            self.dpp = ('_dpp' in mn) or any(k in rest for k in ('row_shr', 'row_ror', 'row_shl', 'quad_perm', 'row_bcast', 'row_mirror', 'row_half_mirror', 'row_newbcast'))
            if 'permlane' in mn and 'swap' in mn:
                self.w = set(R[0]) | set(R[1])
                self.r = set(R[0]) | set(R[1])
            else:
                self.w = set(R[0])
                nd = 1
                if mn.startswith(('v_add_co', 'v_sub_co', 'v_addc_co', 'v_subb_co', 'v_subrev_co')):
                    self.w |= set(R[1])
                    nd = 2
                for x in R[nd:]:
                    self.r |= set(x)
                if mn.startswith(('v_fmac', 'v_pk_fmac', 'v_writelane')) or self.dpp:
                    self.r |= set(R[0])
                if mn.startswith('v_cmpx'):
                    raise ValueError('avoid v_cmpx')
        elif mn.startswith('ds_'):
            self.cls = 'ds'
            if mn.startswith(('ds_read', 'ds_bpermute', 'ds_permute', 'ds_swizzle')):
                self.w = set(R[0])
                for x in R[1:]:
                    self.r |= set(x)
            else:
                for x in R:
                    self.r |= set(x)
        elif mn.startswith(('buffer_', 'global_')):
            self.cls = 'vmem'
            toks = rest.replace(',', ' ').split()
            islds = ('lds' in toks) or ('_lds_' in mn)
            self.lds = islds
            if 'load' in mn:
                if islds:
                    for x in R:
                        self.r |= set(x)
                    self.r.add(('x', 'm0'))
                else:
                    self.w = set(R[0])
                    for x in R[1:]:
                        self.r |= set(x)
            elif 'store' in mn:
                for x in R:
                    self.r |= set(x)
                self.data = set(R[0]) if mn.startswith('buffer_') else set(R[1])
                self.wide = mn.endswith(('x3', 'x4'))
            elif 'atomic' in mn:
                ret = 'sc0' in toks
                if mn.startswith('global_') and ret:
                    self.w = set(R[0])
                    for x in R[1:]:
                        self.r |= set(x)
                else:
                    for x in R:
                        self.r |= set(x)
                    if ret:
                        self.w = set(R[0])
            else:
                raise ValueError(text)
        elif mn.startswith(('s_load', 's_memtime', 's_memrealtime', 's_buffer_load')):
            self.cls = 'smem'
            self.w = set(R[0])
            for x in R[1:]:
                self.r |= set(x)
        elif mn.startswith('s_'):
            self.cls = 'salu'
            if mn.startswith(('s_cmp', 's_bitcmp')):
                for x in R:
                    self.r |= set(x)
            else:
                self.w = set(R[0]) if R else set()
                for x in R[1:]:
                    self.r |= set(x)
                if 'saveexec' in mn:
                    self.w.add(('x', 'exec'))
        else:
            raise ValueError('unknown instruction: ' + text)


def vec(s):
    return set(x for x in s if x[0] in 'va')


def sca(s):
    return set(x for x in s if x[0] in 's' or x == ('x', 'vcc'))


def need(p, c):
    n = 0
    isvalu_p = p.cls in ('valu', 'trans')
    isvalu_c = c.cls in ('valu', 'trans')
    if isvalu_p:
        pw = vec(p.w)
        if c.cls == 'mfma' and pw & c.r:
            n = max(n, 2)
        if isvalu_c:
            if c.dpp and pw & c.r:
                n = max(n, 2)
            if 'permlane' in c.mn and pw & c.r:
                n = max(n, 2)
            if c.mn.startswith(('v_readlane', 'v_readfirstlane')) and pw & c.r:
                n = max(n, 1)
            if p.cls == 'trans' and pw & c.r:
                n = max(n, 1)
            if sca(p.w) & c.r:
                n = max(n, 4 if c.mn.startswith(('v_readlane', 'v_writelane')) else 2)
        if c.cls == 'vmem' and sca(p.w) & c.r:
            n = max(n, 5)
        if c.cls in ('salu', 'smem') and sca(p.w) & c.r:
            n = max(n, 1)
    if p.cls == 'mfma':
        D = set(p.D)
        big = {4: 8, 8: 12}[p.passes]
        if c.cls == 'mfma':
            if D & (set(c.A) | set(c.B)):
                n = max(n, big)
            if D & set(c.C):
                if not (list(p.D) == list(c.C) and p.mn == c.mn):
                    n = max(n, {4: 6, 8: 10}[p.passes])
            elif D & set(c.D):
                n = max(n, big)
        elif isvalu_c or c.cls in ('vmem', 'ds'):
            if D & (c.r | c.w):
                n = max(n, big)
        if isvalu_c and set(p.C) & c.w:
            n = max(n, {4: 3, 8: 7}[p.passes])
    if p.cls == 'salu' and ('x', 'm0') in p.w and c.cls == 'vmem' and c.lds:
        n = max(n, 1)
    if p.cls == 'vmem' and p.wide and (p.data & c.w):
        n = max(n, 2 if isvalu_c else 1)
    return n


class Asm:
    def __init__(self):
        self.items = []

    def __call__(self, s):
        for line in s.split('\n'):
            t = line.strip()
            if not t or t.startswith(';'):
                continue
            if t.endswith(':') and ' ' not in t:
                self.items.append(('l', t[:-1]))
            elif t.startswith('.'):
                self.items.append(('d', t))
            else:
                self.items.append(('i', Ins(t)))

    def label(self, n):
        self.items.append(('l', n))

    def raw(self, t):
        self.items.append(('d', t))

    def fix_hazards(self, maxd=13):
        total = 0
        for _ in range(4):
            items = self.items
            lab = {}
            for k, it in enumerate(items):
                if it[0] == 'l':
                    lab[it[1]] = k
            jump_srcs = {}
            for k, it in enumerate(items):
                if it[0] == 'i' and it[1].cls == 'branch':
                    jump_srcs.setdefault(lab[it[1].target], []).append(k)
            ins = {}
            extra = {}

            def deficiency(k):
                c = items[k][1]
                worst = 0
                stack = [(k - 1, extra.get(k, 0))]
                seen = set()
                while stack:
                    j, d = stack.pop()
                    while j >= 0 and d < maxd:
                        if (j, d) in seen:
                            break
                        seen.add((j, d))
                        it = items[j]
                        if it[0] == 'l':
                            for src in jump_srcs.get(j, []):
                                stack.append((src, d))
                            jj = j - 1
                            while jj >= 0 and items[jj][0] != 'i' and items[jj][0] != 'l':
                                jj -= 1
                            if jj >= 0 and items[jj][0] == 'i' and items[jj][1].mn in ('s_branch', 's_endpgm'):
                                break
                            j -= 1
                            continue
                        if it[0] == 'd':
                            j -= 1
                            continue
                        p = it[1]
                        worst = max(worst, need(p, c) - d)
                        d += p.states + extra.get(j, 0)
                        j -= 1
                return worst
            changed = 0
            for k, it in enumerate(items):
                if it[0] != 'i' or it[1].cls in ('nop', 'misc', 'branch'):
                    continue
                w = deficiency(k)
                if w > 0:
                    extra[k] = extra.get(k, 0) + w
                    changed += 1
            if not changed:
                break
            new = []
            for k, it in enumerate(items):
                if k in extra:
                    new.append(('i', Ins(f's_nop {extra[k] - 1}')))
                    total += 1
                new.append(it)
            self.items = new
        return total

    def text(self):
        out = []
        for it in self.items:
            if it[0] == 'i':
                out.append('  ' + it[1].text)
            elif it[0] == 'l':
                out.append(it[1] + ':')
            else:
                out.append(it[1])
        return '\n'.join(out) + '\n'


def interleave(main, fill, per=2, start=0):
    out = []
    fill = list(fill)
    for k, m in enumerate(main):
        out.append(m)
        if k >= start:
            for _ in range(per):
                if fill:
                    out.append(fill.pop(0))
    out += fill
    return out
```

```python
from gen import *
from asmlib import interleave
import math, struct


def f2u(x):
    return struct.unpack('<I', struct.pack('<f', x))[0]


V_L16, V_L8, V_KM, V_VM, V_XA, V_OA, V_Z, V_FI, V_FO, V_T, V_GA = 1, 2, 3, 4, 5, 6, 7, 8, 10, 12, 14
BIAS, ONES, BACC, LOG = 16, 28, 32, 40
W = lambda k: 44 + 4 * k
WD = 144
(S_SEG, S_J, S_T, S_T2, S_M0B, S_C, S_NC, S_FQ, S_FH, S_FM, S_FOW, S_FOR, S_D3, S_M3, S_MK1, S_ND1, S_MK2, S_ND2,
 S_QO, S_KO, S_OO, S_TT, S_EH, S_TTP, S_LB, S_RB) = range(40, 66)
S_OK = 66
SRD_GW = 72
SRD_OUT = SRD_C


def d32(d, av, b, c, ak='v'):
    return f'v_mfma_f32_16x16x32_bf16 {q(d)}, {q(av, 4, ak)}, {q(b)}, {c}'


class PhaseBMixin:
    def wait_flags(self, s_addr, conds, sleep=2):
        a = self.a
        l = self.L('L_wf')
        l2 = self.L('L_wf')
        a(f's_branch {l2}')
        a(f'{l}:')
        a(f's_sleep {sleep}')
        self.spin_check()
        a(f'{l2}:')
        a(f'buffer_load_dwordx2 v[{V_FI}:{V_FI + 1}], v{V_L8}, {srd(SRD_WS)}, s{s_addr} offen sc1')
        a('s_waitcnt vmcnt(0)')
        a(f'v_cmp_eq_u32 s[{S_OK}:{S_OK + 1}], v{V_FO + 1}, v{V_FI + 1}')
        for k, (mask, need) in enumerate(conds):
            a(f's_add_u32 s{S_T}, s{need}, s{S_NONCE}')
            a(f's_add_u32 s{S_T}, s{S_T}, 1')
            a(f'v_subrev_u32 v{V_T}, s{S_T}, v{V_FI}')
            a(f'v_cmp_gt_u32 vcc, 64, v{V_T}')
            a(f's_and_b32 s{S_T}, s{S_OK}, vcc_lo')
            a(f's_andn2_b32 s{S_T}, {mask}, s{S_T}')
            a(f's_cbranch_scc1 {l}')

    def phase_b(self):
        a = self.a
        WS = srd(SRD_WS)
        a(f's_load_dwordx2 s[80:81], s[0:1], {KA_WO}')
        a(f's_load_dwordx4 s[84:87], s[0:1], {KA_WD}')
        a(f's_load_dwordx2 s[88:89], s[0:1], {KA_OUT}')
        a(f's_and_b32 s36, s{S_SLOT}, 15')
        a('s_lshl_b32 s36, s36, 6')
        a(f's_lshr_b32 s{S_TTP}, s{S_SLOT}, 4')
        a(f's_and_b32 s{S_TT}, s{S_WAVE}, 1')
        a(f's_lshr_b32 s{S_EH}, s{S_WAVE}, 1')
        a('s_waitcnt lgkmcnt(0)')
        a(f's_lshl_b32 s37, s{S_WAVE}, 20')
        a('s_add_u32 s37, s37, s36')
        a('s_add_u32 s38, s80, s37')
        a('s_addc_u32 s39, s81, 0')
        a(f's_sub_u32 s37, {4 * MB}, s37')
        self.mk_srd(SRD_A, 's38', 's39', 's37')
        a(f's_mul_i32 s37, s{S_WAVE}, {448 * 1024}')
        a('s_add_u32 s37, s37, s36')
        a('s_add_u32 s38, s84, s37')
        a('s_addc_u32 s39, s85, 0')
        a(f's_sub_u32 s37, {1792 * 1024}, s37')
        self.mk_srd(SRD_B, 's38', 's39', 's37')
        self.mk_srd(SRD_GW, 's86', 's87', 1024)
        self.mk_srd(SRD_OUT, 's88', 's89', 2048 * 1024)
        a('v_and_b32 v20, 15, v0')
        a('v_lshrrev_b32 v21, 4, v0')
        a(f's_lshl_b32 s37, s{S_WAVE}, 5')
        a('s_add_u32 s36, s36, s37')
        a(f'v_lshlrev_b32 v{V_OA}, 10, v20')
        a(f'v_lshl_add_u32 v{V_OA}, v21, 3, v{V_OA}')
        a(f'v_add_u32 v{V_OA}, s36, v{V_OA}')
        SV, SA0, SA1 = 22, 23, 24
        a(f's_mov_b32 s{S_T2}, 1024')
        self.slab_setup(SV, SA0, SA1, f's{S_T2}', 'split', 26)
        a(f's_mul_i32 s{S_M0B}, s{S_WAVE}, 40960')
        chunks = []
        for c in range(4):
            chunks.append(dict(srd=SRD_B, voff=SV, soff=(lambda j, st, c=c: f's_mov_b32 s{st}, {(c * 8 + j) * 16384}'), nd=8 if c < 3 else 4,
                               dst=(lambda kk, t, c=c: ('v', WD + (t * 14 + c * 4 + kk) * 4))))
        for c in range(8):
            chunks.append(dict(srd=SRD_A, voff=SV, soff=(lambda j, st, c=c: f's_mov_b32 s{st}, {(c * 8 + j) * 16384}'), nd=8,
                               dst=(lambda kk, t, c=c: ('a', (t * 32 + c * 4 + kk) * 4))))
        self.slab_load(chunks, SA0, SA1, 'split', S_M0B, S_T)
        self.get_nonce(8)
        a('s_barrier')
        a(f'v_lshlrev_b32 v{V_L16}, 4, v0')
        a(f'v_lshlrev_b32 v{V_L8}, 3, v0')
        a(f'v_and_b32 v{W(0)}, 15, v0')
        a(f'v_lshrrev_b32 v{W(0) + 1}, 4, v0')
        I, Gg, t0, t1 = W(0), W(0) + 1, W(0) + 2, W(0) + 3
        a(f'v_and_b32 v{t0}, 7, v{I}')
        a(f'v_lshl_add_u32 v{t0}, v{Gg}, 3, v{t0}')
        a(f'v_lshlrev_b32 v{V_KM}, 4, v{t0}')
        a(f'v_and_b32 v{t0}, 1, v{Gg}')
        a(f'v_lshl_add_u32 v{t0}, v{t0}, 4, v{I}')
        a(f'v_lshlrev_b32 v{V_VM}, 3, v{t0}')
        a(f's_lshl_b32 s36, s{S_EH}, 10')
        a(f'v_add_u32 v{V_VM}, s36, v{V_VM}')
        a(f's_lshl_b32 s36, s{S_WAVE}, 8')
        a(f'v_lshlrev_b32 v{V_GA}, 4, v{Gg}')
        a(f'v_add_u32 v{V_GA}, s36, v{V_GA}')
        a(f'v_lshl_add_u32 v{V_XA}, v{I}, 10, v{V_GA}')
        a(f'v_mov_b32 v{V_Z}, 0')
        a(f'v_mov_b32 v{V_FO + 1}, s{S_NONCE + 1}')
        for r in range(4):
            a(f'v_mov_b32 v{ONES + r}, 0x3f803f80')
        a(f's_lshl_b32 s36, s{S_TT}, 4')
        a(f'v_add_u32 v{t0}, s36, v{I}')
        a(f'v_lshlrev_b32 v{t1}, 2, v{Gg}')
        a(f'v_sub_u32 v{t0}, v{t0}, v{t1}')
        a(f'v_mov_b32 v{t1}, 0xff800000')
        for kt in range(2):
            for r in range(4):
                a(f'v_cmp_le_i32 vcc, {16 * kt + r}, v{t0}')
                a(f'v_cndmask_b32 v{BIAS + kt * 4 + r}, v{t1}, v{V_Z}, vcc')
        a(f'v_cmp_gt_u32 vcc, 2, v{Gg}')
        for r in range(4):
            a(f'v_cndmask_b32 v{BIAS + 8 + r}, v{t1}, v{V_Z}, vcc')
        c = 128 ** -0.5 * math.log2(math.e)
        a(f's_mov_b32 s{S_C}, {hex(f2u(c))}')
        a(f's_mov_b32 s{S_NC}, {hex(f2u(-c))}')
        a(f's_lshl_b32 s{S_FQ}, s{S_SLOT}, 8')
        a(f's_add_u32 s{S_FQ}, s{S_FQ}, {FL_QKV}')
        a(f's_lshl_b32 s{S_FM}, s{S_SLOT}, 7')
        a(f's_add_u32 s{S_FM}, s{S_FM}, {FL_M}')
        a(f's_lshl_b32 s36, s{S_GRP}, 10')
        a(f's_add_u32 s36, s36, {FL_O}')
        a(f's_lshl_b32 s37, s{S_TT}, 9')
        a(f's_add_u32 s{S_FOW}, s36, s37')
        a(f's_lshl_b32 s37, s{S_SLOT}, 4')
        a(f's_add_u32 s{S_FOW}, s{S_FOW}, s37')
        a(f's_lshl_b32 s37, s{S_EH}, 3')
        a(f's_add_u32 s{S_FOW}, s{S_FOW}, s37')
        a(f's_lshl_b32 s37, s{S_TTP}, 9')
        a(f's_add_u32 s{S_FOR}, s36, s37')
        a(f's_lshl_b32 s37, s{S_WAVE}, 7')
        a(f's_add_u32 s{S_FOR}, s{S_FOR}, s37')
        a(f's_sub_u32 s{S_SEG}, s{S_GRP}, 1')
        a(f's_mov_b32 s{S_J}, 0')
        a(f's_mov_b32 s{S_LB}, 0')
        a('L_B_loop:')
        a(f's_mul_i32 s{S_D3}, s{S_SEG}, 0x5556')
        a(f's_lshr_b32 s{S_D3}, s{S_D3}, 16')
        a(f's_mul_i32 s36, s{S_D3}, 3')
        a(f's_sub_u32 s{S_M3}, s{S_SEG}, s36')
        a(f's_lshl_b32 s{S_FH}, s{S_M3}, 9')
        a(f's_mul_i32 s36, s{S_WAVE}, 112')
        a(f's_add_u32 s{S_FH}, s{S_FH}, s36')
        a(f's_add_u32 s{S_FH}, s{S_FH}, {FL_H}')
        self.wait_flags(S_FH, [('0x3fff', S_D3)])
        a(f's_lshl_b32 s36, s{S_SEG}, 1')
        a(f's_add_u32 s36, s36, s{S_TTP}')
        a(f's_lshl_b32 s{S_RB}, s36, 14')
        a(f's_lshl_b32 s{S_OO}, s36, 17')
        a(f's_mul_i32 s36, s36, {H_TS}')
        a(f's_mul_i32 s37, s{S_WAVE}, {14 * 1024}')
        a('s_add_u32 s36, s36, s37')
        a(f's_add_u32 s36, s36, {WS_H}')
        for k in range(4):
            a(f'buffer_load_dwordx4 {q(W(14 + k))}, v{V_XA}, {srd(SRD_X)}, s{S_RB} offen offset:{k * 64}')
            a(f'buffer_load_dwordx4 {q(W(18 + k))}, v{V_GA}, {srd(SRD_GW)}, 0 offen offset:{k * 64}')
        for k in range(14):
            if k and k % 4 == 0:
                a('s_add_u32 s36, s36, 4096')
            a(f'buffer_load_dwordx4 {q(W(k))}, v{V_L16}, {WS}, s36 offen offset:{(k & 3) * 1024} sc1')
        a('s_waitcnt vmcnt(14)')
        for k in range(4):
            a(d32(LOG, W(18 + k), W(14 + k), '0' if k == 0 else q(LOG)))
        for k in range(14):
            a(f's_waitcnt vmcnt({13 - k})')
            for t in range(2):
                a(d32(BACC + 4 * t, WD + (t * 14 + k) * 4, W(k), '0' if k == 0 else q(BACC + 4 * t)))
        a(f's_and_b32 s36, s{S_SEG}, 3')
        a(f's_lshl_b32 s{S_MK1}, 0x1111, s36')
        a(f's_lshr_b32 s{S_ND1}, s{S_SEG}, 2')
        a(f's_lshl_b32 s{S_MK2}, 0x110000, s{S_M3}')
        self.wait_flags(S_FQ, [(f's{S_MK1}', S_ND1), (f's{S_MK2}', S_D3)])
        a(f's_lshl_b32 s36, s{S_SEG}, 5')
        a(f's_add_u32 s36, s36, s{S_SLOT}')
        a(f's_lshl_b32 s{S_KO}, s36, 14')
        a(f's_lshl_b32 s{S_QO}, s36, 13')
        a(f's_lshl_b32 s37, s{S_TT}, 12')
        a(f's_add_u32 s{S_QO}, s{S_QO}, s37')
        a(f's_add_u32 s{S_QO}, s{S_QO}, {WS_Q}')
        a(f's_lshl_b32 s{S_T2}, s36, 12')
        a(f's_add_u32 s{S_T2}, s{S_T2}, {WS_KVM}')
        QF = [W(k) for k in range(4)]
        KF = [W(4 + k) for k in range(8)]
        VF = [W(12 + k) for k in range(4)]
        S0, S1, S2 = W(16), W(17), W(18)
        KM = [W(19 + k) for k in range(4)]
        VM = W(23)
        for k in range(4):
            a(f'buffer_load_dwordx4 {q(QF[k])}, v{V_L16}, {WS}, s{S_QO} offen offset:{k * 1024} sc1')
        for k in range(4):
            a(f'buffer_load_dwordx4 {q(KF[k])}, v{V_L16}, {WS}, s{S_KO} offen offset:{k * 1024} sc1')
        a(f's_add_u32 s36, s{S_KO}, 4096')
        for k in range(4):
            a(f'buffer_load_dwordx4 {q(KF[4 + k])}, v{V_L16}, {WS}, s36 offen offset:{k * 1024} sc1')
        a(f's_lshl_b32 s37, s{S_EH}, 12')
        a('s_add_u32 s36, s36, s37')
        a('s_add_u32 s36, s36, 4096')
        for k in range(4):
            a(f'buffer_load_dwordx4 {q(VF[k])}, v{V_L16}, {WS}, s36 offen offset:{k * 1024} sc1')
        a('s_waitcnt vmcnt(8)')
        for k in range(4):
            a(d32(S0, KF[k], QF[k], q(BIAS) if k == 0 else q(S0)))
        a('s_waitcnt vmcnt(4)')
        for k in range(4):
            a(d32(S1, KF[4 + k], QF[k], q(BIAS + 4) if k == 0 else q(S1)))
        self.wait_flags(S_FM, [('0xf', S_SEG)], sleep=1)
        for k in range(4):
            a(f'buffer_load_dwordx4 {q(KM[k])}, v{V_KM}, {WS}, s{S_T2} offen offset:{k * 512} sc1')
        for t in range(4):
            a(f'buffer_load_dwordx2 v[{VM + 2 * t}:{VM + 2 * t + 1}], v{V_VM}, {WS}, s{S_T2} offen offset:{2048 + t * 256} sc1')
        sv = [S0 + r for r in range(4)] + [S1 + r for r in range(4)] + [S2 + r for r in range(4)]
        TM = V_T
        a(f'v_max3_f32 v{TM}, v{sv[0]}, v{sv[1]}, v{sv[2]}')
        a(f'v_max3_f32 v{TM}, v{sv[3]}, v{sv[4]}, v{TM}')
        a(f'v_max3_f32 v{TM}, v{sv[5]}, v{sv[6]}, v{TM}')
        for k in range(4):
            a(f's_waitcnt vmcnt({7 - k})')
            a(d32(S2, KM[k], QF[k], q(BIAS + 8) if k == 0 else q(S2)))
        a(f'v_max3_f32 v{TM}, v{sv[7]}, v{sv[8]}, v{TM}')
        a(f'v_max3_f32 v{TM}, v{sv[9]}, v{sv[10]}, v{TM}')
        a(f'v_max_f32 v{TM}, v{sv[11]}, v{TM}')
        a(f'v_mov_b32 v{TM + 1}, v{TM}')
        a(f'v_permlane16_swap_b32 v{TM}, v{TM + 1}')
        a(f'v_max_f32 v{TM}, v{TM}, v{TM + 1}')
        a(f'v_mov_b32 v{TM + 1}, v{TM}')
        a(f'v_permlane32_swap_b32 v{TM}, v{TM + 1}')
        a(f'v_max_f32 v{TM}, v{TM}, v{TM + 1}')
        a(f'v_mul_f32 v{TM}, s{S_NC}, v{TM}')
        for r in sv:
            a(f'v_fma_f32 v{r}, v{r}, s{S_C}, v{TM}')
        for r in sv:
            a(f'v_exp_f32 v{r}, v{r}')
        PX, PM, Z = KF[0], KF[1], KF[2]
        OA = KF[4:8]
        for r in range(4):
            a(f'v_cvt_pk_bf16_f32 v{PX + r}, v{sv[2 * r]}, v{sv[2 * r + 1]}')
        for r in range(2):
            a(f'v_cvt_pk_bf16_f32 v{PM + r}, v{sv[8 + 2 * r]}, v{sv[8 + 2 * r + 1]}')
        a('s_waitcnt vmcnt(0)')
        a(d32(Z, ONES, PX, '0'))
        for t in range(4):
            a(d32(OA[t], VF[t], PX, '0'))
        a(f'v_mfma_f32_16x16x16_bf16 {q(Z)}, v[{ONES}:{ONES + 1}], v[{PM}:{PM + 1}], {q(Z)}')
        for t in range(4):
            a(f'v_mfma_f32_16x16x16_bf16 {q(OA[t])}, v[{VM + 2 * t}:{VM + 2 * t + 1}], v[{PM}:{PM + 1}], {q(OA[t])}')
        a(f'v_rcp_f32 v{Z}, v{Z}')
        a(f's_lshl_b32 s36, s{S_SEG}, 1')
        a(f's_add_u32 s36, s36, s{S_TT}')
        a('s_lshl_b32 s36, s36, 17')
        a(f's_lshl_b32 s37, s{S_SLOT}, 12')
        a('s_add_u32 s36, s36, s37')
        a(f's_lshl_b32 s37, s{S_EH}, 11')
        a('s_add_u32 s36, s36, s37')
        a(f's_add_u32 s36, s36, {WS_O}')
        for u in range(2):
            o = QF[u]
            for hh in range(2):
                t = OA[2 * u + hh]
                for r in range(4):
                    a(f'v_mul_f32 v{t + r}, v{t + r}, v{Z}')
                for p in range(2):
                    a(f'v_cvt_pk_bf16_f32 v{o + 2 * hh + p}, v{t + 2 * p}, v{t + 2 * p + 1}')
            a(f'buffer_store_dwordx4 {q(o)}, v{V_L16}, {WS}, s36 offen offset:{u * 1024} sc1')
        a(f's_add_u32 s36, s{S_J}, s{S_NONCE}')
        a('s_add_u32 s36, s36, 1')
        a(f'v_mov_b32 v{V_FO}, s36')
        a('s_waitcnt vmcnt(0)')
        a('s_mov_b64 exec, 1')
        a(f'buffer_store_dwordx2 v[{V_FO}:{V_FO + 1}], v{V_Z}, {WS}, s{S_FOW} offen sc1')
        a('s_mov_b64 exec, -1')
        self.wait_flags(S_FOR, [('0xffff', S_J)], sleep=1)
        a(f's_lshl_b32 s36, s{S_WAVE}, 15')
        a(f's_add_u32 s36, s36, s{S_OO}')
        a(f's_add_u32 s36, s36, {WS_O}')
        AACC = W(0)
        NB = 22

        def oload(k):
            x = []
            if k and k % 4 == 0:
                x.append('s_add_u32 s36, s36, 4096')
            x.append(f'buffer_load_dwordx4 {q(W(2 + k % NB))}, v{V_L16}, {WS}, s36 offen offset:{(k & 3) * 1024} sc1')
            return x
        for k in range(NB):
            for x in oload(k):
                a(x)
        for k in range(32):
            issued = min(32, NB + k)
            a(f's_waitcnt vmcnt({issued - k - 1})')
            for t in range(2):
                a(d32(AACC + 4 * t, (t * 32 + k) * 4, W(2 + k % NB), '0' if k == 0 else q(AACC + 4 * t), 'a'))
            if k + NB < 32:
                for x in oload(k + NB):
                    a(x)
        a(f's_lshl_b32 s36, s{S_WAVE}, 10')
        a(f's_add_u32 s36, s36, s{S_LB}')
        a(f'v_add_u32 v{V_T}, s36, v{V_L16}')
        a(f's_lshl_b32 s36, s{S_WAVE}, 8')
        a(f's_add_u32 s36, s36, s{S_LB}')
        a(f'v_lshl_add_u32 v{V_T + 1}, v0, 2, s36')
        a(f'ds_write_b128 v{V_T}, {q(BACC)} offset:8192')
        a(f'ds_write_b128 v{V_T}, {q(BACC + 4)} offset:12288')
        a(f'ds_write_b32 v{V_T + 1}, v{LOG} offset:16384')
        a(f'ds_write_b128 v{V_T}, {q(AACC)}')
        a(f'ds_write_b128 v{V_T}, {q(AACC + 4)} offset:4096')
        a('s_waitcnt lgkmcnt(0)')
        a('s_barrier')
        a(f's_cmp_ge_u32 s{S_WAVE}, 2')
        a('s_cbranch_scc1 L_B_next')
        a(f's_lshl_b32 s36, s{S_WAVE}, 12')
        a(f's_add_u32 s36, s36, s{S_LB}')
        a(f'v_add_u32 v{V_T}, s36, v{V_L16}')
        a(f'v_lshl_add_u32 v{V_T + 1}, v0, 2, s{S_LB}')
        LG = W(10)
        for w in range(4):
            a(f'ds_read_b32 v{LG + w}, v{V_T + 1} offset:{16384 + w * 256}')
        for w in range(4):
            a(f'ds_read_b128 {q(W(2 + w))}, v{V_T} offset:{w * 1024}')
        for w in range(4):
            a(f'ds_read_b128 {q(W(6 + w))}, v{V_T} offset:{8192 + w * 1024}')
        a('s_waitcnt lgkmcnt(8)')
        a(f'v_add_f32 v{LG}, v{LG}, v{LG + 1}')
        a(f'v_add_f32 v{LG + 2}, v{LG + 2}, v{LG + 3}')
        a(f'v_add_f32 v{LG}, v{LG}, v{LG + 2}')

        def rnd(r):
            a(f'v_cvt_pk_bf16_f32 v{r}, v{r}, v{r}')
            a(f'v_and_b32 v{r}, 0xffff0000, v{r}')
        rnd(LG)
        a(f'v_mul_f32 v{LG}, {hex(f2u(-math.log2(math.e)))}, v{LG}')
        a(f'v_exp_f32 v{LG}, v{LG}')
        a(f'v_add_f32 v{LG}, 1.0, v{LG}')
        a(f'v_rcp_f32 v{LG}, v{LG}')
        rnd(LG)
        a(f'v_sub_f32 v{LG + 1}, 1.0, v{LG}')
        rnd(LG + 1)
        a('s_waitcnt lgkmcnt(0)')
        for base, gr in ((W(2), LG), (W(6), LG + 1)):
            for r in range(4):
                a(f'v_add_f32 v{base + r}, v{base + r}, v{base + 4 + r}')
                a(f'v_add_f32 v{base + 8 + r}, v{base + 8 + r}, v{base + 12 + r}')
            for r in range(4):
                a(f'v_add_f32 v{base + r}, v{base + r}, v{base + 8 + r}')
            for r in range(4):
                rnd(base + r)
            for r in range(4):
                a(f'v_mul_f32 v{base + r}, v{base + r}, v{gr}')
            for r in range(4):
                rnd(base + r)
        for r in range(4):
            a(f'v_add_f32 v{W(2) + r}, v{W(2) + r}, v{W(6) + r}')
        a(f'v_cvt_pk_bf16_f32 v{W(2)}, v{W(2)}, v{W(2) + 1}')
        a(f'v_cvt_pk_bf16_f32 v{W(2) + 1}, v{W(2) + 2}, v{W(2) + 3}')
        a(f'buffer_store_dwordx2 v[{W(2)}:{W(2) + 1}], v{V_OA}, {srd(SRD_OUT)}, s{S_RB} offen')
        a('L_B_next:')
        a(f's_xor_b32 s{S_LB}, s{S_LB}, 0x8000')
        a(f's_add_u32 s{S_J}, s{S_J}, 1')
        a(f's_add_u32 s{S_SEG}, s{S_SEG}, 7')
        a(f's_cmp_lt_u32 s{S_SEG}, 64')
        a('s_cbranch_scc1 L_B_loop')
```

```python
from gen import *
from asmlib import interleave
import math, struct

L_K = 0
L_IMG = 16384
L_TQ = 24576
L_TK = 26624
L_OX = 28672
L_WO = 32768

V_IDX, V_L16, V_IMG, V_IR, V_TW, V_FR, V_FO, V_OW, V_WO = 1, 2, 3, 4, 7, 8, 9, 10, 11
V_P1, V_P2, V_L8, V_KM, V_FLA, V_ZERO, V_FLO, V_FLI, V_KR, V_SEL = 12, 13, 14, 15, 16, 17, 18, 20, 22, 23
V_VC, V_VN = 24, 32
T = lambda k: 40 + 4 * k
M = [T(k) for k in range(8)]
Q0, Q1, K0, K1, V0, V1 = [T(k) for k in range(8, 14)]
X = [T(k) for k in range(14, 22)]

S_STEP, S_KVO, S_KVM, S_RA, S_RAP, S_RB, S_RBC, S_C, S_NC, S_T, S_T2, S_M0K, S_FLM, S_FLQ, S_RA1, S_GA, S_GAP = range(40, 57)
S_RB0 = 58
S_MLO, S_MHI, S_MM, S_MPUB, S_OK = 62, 64, 66, 68, 70
SRD_WO, SRD_M0 = 72, 76
S_ST = 80


def f2u(x):
    return struct.unpack('<I', struct.pack('<f', x))[0]


def smf(d, av, b, kind):
    return f'v_smfmac_f32_16x16x64_bf16 {q(d)}, {q(av)}, {kind}[{b}:{b + 7}], v{V_IDX}'


class TeamMixin:
    def stamp(self, k):
        if self.o.get('prof'):
            self.a(f's_memtime s[{S_ST + 2 * k}:{S_ST + 2 * k + 1}]')

    def team(self):
        a = self.a
        WS = srd(SRD_WS)
        a(f's_load_dwordx4 s[80:83], s[0:1], {KA_WQ}')
        a(f's_load_dwordx4 s[84:87], s[0:1], {KA_WV}')
        a(f's_load_dwordx2 s[88:89], s[0:1], {KA_MEM0}')
        a('v_and_b32 v40, 15, v0')
        a('v_lshrrev_b32 v41, 4, v0')
        a(f'v_lshlrev_b32 v{V_L16}, 4, v0')
        a(f's_lshl_b32 s36, s{S_WAVE}, 11')
        a(f'v_add_u32 v{V_IMG}, s36, v{V_L16}')
        for p in range(1, 4):
            a(f'v_xor_b32 v{V_IR + p - 1}, {p * 2048}, v{V_IMG}')
        a('v_and_b32 v42, 3, v0')
        a(f's_lshl_b32 s36, s{S_WAVE}, 2')
        a('v_add_u32 v42, s36, v42')
        a('v_lshrrev_b32 v43, 3, v42')
        a(f'v_lshlrev_b32 v{V_P2}, 10, v43')
        a('v_bfe_u32 v43, v42, 1, 2')
        a(f'v_lshl_add_u32 v{V_P2}, v43, 8, v{V_P2}')
        a('v_and_b32 v43, 1, v42')
        a(f'v_lshl_add_u32 v{V_P2}, v43, 3, v{V_P2}')
        a(f'v_lshl_add_u32 v{V_P2}, v41, 4, v{V_P2}')
        a(f's_lshr_b32 s36, s{S_SLOT}, 3')
        a('s_lshl_b32 s36, s36, 11')
        a(f's_and_b32 s37, s{S_SLOT}, 3')
        a('s_lshl_b32 s37, s37, 6')
        a('s_add_u32 s36, s36, s37')
        a(f's_and_b32 s37, s{S_SLOT}, 4')
        a('s_add_u32 s36, s36, s37')
        a(f'v_add_u32 v{V_P2}, s36, v{V_P2}')
        a(f's_mov_b32 s{S_MPUB}, 0x000f000f')
        a(f's_mov_b32 s{S_MPUB + 1}, 0x000f000f')
        a(f's_mov_b32 s{S_MLO}, 0x00ff00ff')
        a(f's_mov_b32 s{S_MLO + 1}, 0x00ff00ff')
        a(f's_mov_b32 s{S_MHI}, 0xff00ff00')
        a(f's_mov_b32 s{S_MHI + 1}, 0xff00ff00')
        a(f's_mov_b32 s{S_MM}, 0x00ff00ff')
        a(f's_mov_b32 s{S_MM + 1}, 0xff00ff00')
        for r in range(4):
            a(f'v_mov_b32 v{44 + r}, -1')
        a(f's_lshl_b32 s{S_GA}, s{S_SLOT}, 13')
        a(f's_add_u32 s{S_GA}, s{S_GA}, {WS_RA}')
        for r in range(2):
            a(f's_add_u32 s36, s{S_GA}, {r * 0x40000}')
            a(f'buffer_store_dwordx4 v[44:47], v{V_IMG}, {WS}, s36 offen sc1')
            a(f'buffer_store_dwordx4 v[44:47], v{V_IMG}, {WS}, s36 offen offset:1024 sc1')
        a(f's_mov_b64 exec, s[{S_MPUB}:{S_MPUB + 1}]')
        for r in range(4):
            a(f's_mov_b32 s36, {WS_RB + r * 8192}')
            a(f'buffer_store_dword v44, v{V_P2}, {WS}, s36 offen sc1')
        a('s_mov_b64 exec, -1')
        a('s_waitcnt lgkmcnt(0)')
        a(f's_lshl_b32 s36, s{S_SLOT}, 8')
        a(f's_lshl_b32 s37, s{S_WAVE}, 6')
        a('s_add_u32 s36, s36, s37')
        a(f's_sub_u32 s37, {4 * MB}, s36')
        for n, p in ((SRD_A, 80), (SRD_B, 82), (SRD_C, 84)):
            a(f's_add_u32 s38, s{p}, s36')
            a(f's_addc_u32 s39, s{p + 1}, 0')
            self.mk_srd(n, 's38', 's39', 's37')
        a(f's_lshl_b32 s36, s{S_SLOT}, 17')
        a('s_add_u32 s38, s86, s36')
        a('s_addc_u32 s39, s87, 0')
        self.mk_srd(SRD_WO, 's38', 's39', 131072)
        self.mk_srd(SRD_M0, 's88', 's89', 8192)
        for c in range(4):
            a(f's_xor_b32 s{S_RB0 + c}, s{S_WAVE}, {c}')
            a(f's_lshl_b32 s{S_RB0 + c}, s{S_RB0 + c}, 20')
        SV, SA0, SA1, WOV = 7, 8, 9, 10
        a(f's_mov_b32 s{S_T2}, 8192')
        self.slab_setup(SV, SA0, SA1, f's{S_T2}', 'nat', 48)
        a('v_and_b32 v42, 1, v41')
        a(f'v_lshlrev_b32 v{WOV}, 15, v42')
        a('v_lshrrev_b32 v42, 1, v41')
        a(f'v_lshl_add_u32 v{WOV}, v42, 12, v{WOV}')
        a(f'v_lshl_add_u32 v{WOV}, v40, 4, v{WOV}')
        a(f's_lshl_b32 s36, s{S_WAVE}, 8')
        a(f'v_add_u32 v{WOV}, s36, v{WOV}')
        a('s_waitcnt vmcnt(0)')
        a('s_barrier')
        a(f's_cmp_lg_u32 s{S_WAVE}, 0')
        a('s_cbranch_scc1 L_T_arr')
        a(f's_cmp_lg_u32 s{S_MIX}, 0')
        a('s_cselect_b32 s36, 0x10001, 1')
        a('v_mov_b32 v44, s36')
        a(f'v_mov_b32 v45, {DBG_TEAMBAR}')
        a('s_mov_b64 exec, 1')
        a(f'global_atomic_add v45, v44, s[{S_DBG}:{S_DBG + 1}]')
        a('s_mov_b64 exec, -1')
        a('s_waitcnt vmcnt(0)')
        a('L_T_arr:')
        a(f's_mul_i32 s{S_M0K}, s{S_WAVE}, 40960')
        chunks = []
        for mi, (sr, kind, base) in enumerate(((SRD_A, 'a', 0), (SRD_B, 'a', 128), (SRD_C, 'v', 128))):
            for c in range(4):
                def soff(j, st, c=c):
                    return f's_add_u32 s{st}, s{S_RB0 + c}, {j * 131072}'

                def dst(kk, t, c=c, kind=kind, base=base):
                    return kind, base + (t * 16 + c * 4 + kk) * 4
                chunks.append(dict(srd=sr, voff=SV, soff=soff, nd=8, dst=dst))
        RAW = [16, 48, 80]

        def wo_issue(rnd):
            sg, half = rnd >> 1, rnd & 1
            for j7 in range(8):
                u, hf, b2 = j7 & 1, (j7 >> 1) & 1, (j7 >> 2) & 1
                if j7 & 1 == 0:
                    a(f's_mov_b32 s{S_T2}, {(64 * sg + 8 * half + 16 * hf) * 1024}')
                a(f'buffer_load_dwordx4 {q(RAW[rnd % 3] + 4 * j7)}, v{WOV}, {srd(SRD_WO)}, s{S_T2} offen offset:{(2 * b2 + u) * 1024}')

        def post():
            for r in range(2):
                wo_issue(r)
            return 16
        self.slab_load(chunks, SA0, SA1, 'nat', S_M0K, S_T, post_issue=post)
        wo_issue(2)
        a('s_barrier')
        a(f's_lshl_b32 s36, s{S_WAVE}, 15')
        a(f's_add_u32 s36, s36, {L_WO}')
        a(f'v_add_u32 v{V_WO}, s36, v{V_L16}')
        a('s_mov_b32 s36, 0x05040100')
        a('s_mov_b32 s37, 0x07060302')
        for rnd in range(4):
            sg, half = rnd >> 1, rnd & 1
            a(f's_waitcnt vmcnt({[16, 16, 8, 0][rnd]})')
            R = RAW[rnd % 3]
            for t8 in range(8):
                s2_, u, hf = t8 >> 2, (t8 >> 1) & 1, t8 & 1
                phi = u + 2 * hf + 4 * s2_
                o = 112 + (t8 & 3) * 4
                if t8 == 4:
                    a('s_waitcnt lgkmcnt(0)')
                for dd in range(4):
                    a(f'v_perm_b32 v{o + dd}, v{R + 4 * (2 * dd + 1) + (phi >> 1)}, v{R + 4 * (2 * dd) + (phi >> 1)}, s{36 + (phi & 1)}')
                a(f'ds_write_b128 v{V_WO}, {q(o)} offset:{((t8 * 2 + sg) * 2 + half) * 1024}')
            a('s_waitcnt lgkmcnt(0)')
            if rnd == 0:
                wo_issue(3)
        a('v_and_b32 v40, 15, v0')
        a('v_lshrrev_b32 v41, 4, v0')
        a('v_cmp_gt_u32 vcc, 8, v40')
        a('v_mov_b32 v42, 0x4444')
        a('v_mov_b32 v43, 0xeeee')
        a(f'v_cndmask_b32 v{V_IDX}, v43, v42, vcc')
        a('v_lshrrev_b32 v42, 1, v41')
        a('v_lshl_add_u32 v42, v42, 4, v40')
        a(f's_lshl_b32 s36, s{S_WAVE}, 9')
        a('v_and_b32 v43, 1, v41')
        a('v_lshlrev_b32 v43, 3, v43')
        a(f'v_lshl_add_u32 v{V_TW}, v42, 4, v43')
        a(f'v_add_u32 v{V_TW}, s36, v{V_TW}')
        a('v_lshrrev_b32 v42, 2, v0')
        a('v_and_b32 v43, 1, v0')
        a('v_lshlrev_b32 v43, 3, v43')
        a(f'v_lshl_add_u32 v{V_FR}, v42, 4, v43')
        a(f'v_add_u32 v{V_FO}, s36, v{V_FR}')
        a(f's_lshr_b32 s37, s{S_WAVE}, 1')
        a('s_lshl_b32 s37, s37, 10')
        a(f's_and_b32 s38, s{S_WAVE}, 1')
        a('s_lshl_b32 s38, s38, 3')
        a('s_add_u32 s37, s37, s38')
        a(f'v_add_u32 v{V_OW}, s37, v{V_L16}')
        a(f's_lshl_b32 s37, s{S_WAVE}, 16')
        a(f's_lshl_b32 s38, s{S_SLOT}, 6')
        a('s_add_u32 s37, s37, s38')
        a('v_and_b32 v43, 3, v0')
        a('v_lshlrev_b32 v43, 4, v43')
        a(f'v_lshl_add_u32 v{V_P1}, v42, 11, v43')
        a(f'v_add_u32 v{V_P1}, s37, v{V_P1}')
        a(f'v_lshlrev_b32 v{V_FLA}, 3, v0')
        a(f'v_add_u32 v{V_L8}, s36, v{V_FLA}')
        a('v_and_b32 v42, 7, v40')
        a('v_lshl_add_u32 v42, v41, 3, v42')
        a(f'v_lshlrev_b32 v{V_KM}, 4, v42')
        a(f'v_add_u32 v{V_KM}, s36, v{V_KM}')
        a(f'v_mov_b32 v{V_ZERO}, 0')
        a(f'v_mov_b32 v{V_KR}, v{V_L16}')
        a('v_and_b32 v42, 1, v40')
        a('v_lshlrev_b32 v42, 4, v42')
        a('v_mov_b32 v43, 0x3f80')
        a(f'v_lshlrev_b32 v{V_SEL}, v42, v43')
        a('v_and_b32 v42, 2, v40')
        a('v_cmp_eq_u32 vcc, 0, v42')
        a(f'v_cndmask_b32 v{V_SEL}, 0, v{V_SEL}, vcc')
        c = 128 ** -0.5 * math.log2(math.e)
        a(f's_mov_b32 s{S_C}, {hex(f2u(c))}')
        a(f's_mov_b32 s{S_NC}, {hex(f2u(-c))}')
        a('v_and_b32 v42, 7, v40')
        a('v_lshlrev_b32 v42, 10, v42')
        a('v_lshl_add_u32 v42, v41, 5, v42')
        a('v_lshrrev_b32 v43, 3, v40')
        a('v_lshl_add_u32 v42, v43, 2, v42')
        a(f's_lshl_b32 s36, s{S_WAVE}, 8')
        a(f'v_add_u32 v{X[0]}, s36, v42')
        self.get_nonce(X[1])
        for k in range(2):
            for t in range(4):
                a(f'buffer_load_dword v{M[k] + t}, v{X[0]}, {srd(SRD_M0)}, 0 offen offset:{k * 128 + 8 * t}')
        a(f'v_mov_b32 v{V_FLO + 1}, s{S_NONCE + 1}')
        a(f's_lshl_b32 s{S_FLQ}, s{S_SLOT}, 8')
        a(f's_add_u32 s{S_FLQ}, s{S_FLQ}, {FL_QKV}')
        a(f's_lshl_b32 s{S_FLM}, s{S_SLOT}, 7')
        a(f's_lshl_b32 s36, s{S_WAVE}, 3')
        a(f's_add_u32 s{S_FLM}, s{S_FLM}, s36')
        a(f's_add_u32 s{S_FLM}, s{S_FLM}, {FL_M}')
        a(f's_lshl_b32 s{S_KVO}, s{S_SLOT}, 14')
        a(f's_lshl_b32 s{S_KVM}, s{S_SLOT}, 12')
        a(f's_add_u32 s{S_KVM}, s{S_KVM}, {WS_KVM}')
        a(f's_lshl_b32 s{S_M0K}, s{S_WAVE}, 11')
        if self.mode != 'T':
            a('s_mov_b32 s36, 0')
            self.kv_wait('s36')
        else:
            a(f'v_mov_b32 v{V_FLI}, 0')
            a(f'v_mov_b32 v{V_FLI + 1}, 0')
        for x in self.kv_loads(V_VC):
            a(x)
        for r in (Q0, Q1, K0, K1, V0, V1):
            a(f'v_mov_b64 v[{r}:{r + 1}], 0')
            a(f'v_mov_b64 v[{r + 2}:{r + 3}], 0')
        a(f'v_mov_b32 v{X[0]}, {DBG_TEAMBAR}')
        a('L_T_bar:')
        self.spin_check()
        a(f'global_load_dword v{X[1]}, v{X[0]}, s[{S_DBG}:{S_DBG + 1}] sc1')
        a('s_waitcnt vmcnt(0)')
        a(f'v_readfirstlane_b32 s36, v{X[1]}')
        a('s_and_b32 s37, s36, 0xffff')
        a('s_cmp_lt_u32 s37, 32')
        a('s_cbranch_scc1 L_T_bar')
        a(f's_mov_b32 s{S_STEP}, 0')
        if self.o.get('prof'):
            for k in range(8):
                a(f'v_mov_b32 v{120 + k}, 0') if False else None
        a('s_lshr_b32 s36, s36, 16')
        a('s_cmp_lg_u32 s36, 0')
        a('s_cbranch_scc1 L_T_loop_x')
        self.team_loop('', 'f')
        self.team_loop('sc1', 'x')
        a('L_T_fin:')
        a('s_waitcnt vmcnt(0)')
        a(f's_add_u32 s36, s{S_NONCE}, 64')
        a(f'v_mov_b32 v{V_FLO}, s36')
        a('s_mov_b64 exec, 1')
        a(f'buffer_store_dwordx2 v[{V_FLO}:{V_FLO + 1}], v{V_ZERO}, {WS}, s{S_FLM} offen sc1')

    def kv_check(self, s_seg):
        return [
            f's_lshr_b32 s{S_T}, {s_seg}, 2',
            f's_add_u32 s{S_T}, s{S_T}, s{S_NONCE}',
            f'v_subrev_u32 v{V_FLO}, s{S_T}, v{V_FLI}',
            f'v_add_u32 v{V_FLO}, -1, v{V_FLO}',
            f'v_cmp_gt_u32 vcc, 64, v{V_FLO}',
            f'v_cmp_eq_u32 s[{S_OK}:{S_OK + 1}], v{V_FLO + 1}, v{V_FLI + 1}',
            f's_and_b32 s{S_T}, {s_seg}, 3',
            f's_lshl_b32 s{S_T}, 0x1111, s{S_T}',
            f's_and_b32 s{S_OK}, s{S_OK}, vcc_lo',
            f's_andn2_b32 s{S_T}, s{S_T}, s{S_OK}',
        ]

    def flag_load(self):
        return f'buffer_load_dwordx2 v[{V_FLI}:{V_FLI + 1}], v{V_FLA}, {srd(SRD_WS)}, s{S_FLQ} offen sc1'

    def kv_wait(self, s_seg):
        a = self.a
        l = self.L('L_kvw')
        a(f'{l}:')
        self.spin_check()
        a(self.flag_load())
        a('s_waitcnt vmcnt(0)')
        for x in self.kv_check(s_seg):
            a(x)
        a(f's_cbranch_scc1 {l}')

    def kv_loads(self, vdst):
        WS = srd(SRD_WS)
        return [
            f's_mov_b32 m0, s{S_M0K}',
            f's_add_u32 s{S_T}, s{S_KVO}, 8192',
            f'buffer_load_dwordx4 v{V_IMG}, {WS}, s{S_KVO} offen sc1 lds',
            f'buffer_load_dwordx4 v{V_IMG}, {WS}, s{S_KVO} offen offset:1024 sc1 lds',
            f'buffer_load_dwordx4 {q(vdst)}, v{V_IMG}, {WS}, s{S_T} offen sc1',
            f'buffer_load_dwordx4 {q(vdst + 4)}, v{V_IMG}, {WS}, s{S_T} offen offset:1024 sc1',
            f's_xor_b32 s{S_M0K}, s{S_M0K}, 8192',
        ]

    def halves(self, d0, d1):
        o = []
        for r in range(4):
            o.append(f'v_permlane32_swap_b32 v{d0 + r}, v{d1 + r}')
        for r in range(4):
            o.append(f'v_add_f32 v{d0 + r}, v{d0 + r}, v{d1 + r}')
        o.append(f'v_cvt_pk_bf16_f32 v{d0}, v{d0}, v{d0 + 1}')
        o.append(f'v_cvt_pk_bf16_f32 v{d0 + 1}, v{d0 + 2}, v{d0 + 3}')
        return o

    def team_loop(self, sf, tag):
        a = self.a
        WS = srd(SRD_WS)
        a(f'L_T_loop_{tag}:')
        self.stamp(0)
        a(f'ds_write_b128 v{V_IMG}, {q(M[0])} offset:{L_IMG}')
        a(f'ds_write_b128 v{V_IMG}, {q(M[1])} offset:{L_IMG + 1024}')

        def wq(t, k):
            return ('a', (t * 16 + 2 * k) * 4)

        def wk(t, k):
            return ('a', 128 + (t * 16 + 2 * k) * 4)

        def wv(t, k):
            return ('v', 128 + (t * 16 + 2 * k) * 4)

        def mm(d, k, w):
            return smf(d, M[k], w[1], w[0])
        own = []
        for k in range(2):
            own += [mm(Q0, k, wq(0, k)), mm(Q1, k, wq(1, k)), mm(K0, k, wk(0, k)), mm(K1, k, wk(1, k))]
        ring = [
            f's_and_b32 s{S_T}, s{S_STEP}, 1',
            f's_lshl_b32 s{S_T}, s{S_T}, 18',
            f's_add_u32 s{S_RA}, s{S_T}, {WS_RA}',
            f's_add_u32 s{S_RA1}, s{S_RA}, 32768',
            f's_add_u32 s{S_GAP}, s{S_GA}, s{S_T}',
            f's_xor_b32 s{S_RAP}, s{S_GAP}, 0x40000',
        ]
        a(own[0]); a(ring[0]); a(ring[1]); a(own[1]); a(ring[2]); a(ring[3]); a(own[2]); a(ring[4]); a(ring[5])
        a('s_waitcnt lgkmcnt(0)')
        a('s_barrier')
        rds = [f'ds_read_b128 {q(M[k])}, v{V_IR + (k >> 1) - 1} offset:{L_IMG + (k & 1) * 1024}' for k in range(2, 8)]
        for x in interleave(own[3:], rds, 2):
            a(x)
        hk = []
        for r in range(2):
            hk.append(f'v_mov_b64 v[{X[7] + 2 * r}:{X[7] + 2 * r + 1}], -1')
        hk += [
            f's_add_u32 s{S_T}, s{S_STEP}, 2',
            f's_and_b32 s{S_T}, s{S_T}, 3',
            f's_lshl_b32 s{S_T}, s{S_T}, 13',
            f's_add_u32 s{S_RBC}, s{S_T}, {WS_RB}',
            f's_xor_b32 s{S_RB}, s{S_RBC}, 0x4000',
            f'buffer_store_dwordx4 {q(X[7])}, v{V_IMG}, {WS}, s{S_RAP} offen {sf}',
            f'buffer_store_dwordx4 {q(X[7])}, v{V_IMG}, {WS}, s{S_RAP} offen offset:1024 {sf}',
        ]
        hk2 = [
            f's_add_u32 s{S_T2}, s{S_STEP}, 1',
            f's_min_u32 s{S_T2}, s{S_T2}, 63',
        ]
        qs = [(Q0, wq, 0), (Q1, wq, 1)]
        ks = [(K0, wk, 0), (K1, wk, 1)]
        qm = []
        for k in range(2, 8):
            qm.append([mm(d, k, f(t, k)) for d, f, t in qs])
        km = []
        for k in range(2, 8):
            km += [mm(d, k, f(t, k)) for d, f, t in ks]
        fill = hk + hk2
        for j, pair in enumerate(qm):
            a(f's_waitcnt lgkmcnt({5 - j})')
            for m_ in pair:
                a(m_)
                for _ in range(1):
                    if fill:
                        a(fill.pop(0))
        for x in fill:
            a(x)
        a(km[0])
        a(f's_add_u32 s{S_T}, s{S_STEP}, s{S_NONCE}')
        a(f'v_mov_b32 v{X[6]}, s{S_T}')
        a(f'v_mov_b32 v{X[6] + 1}, v{V_FLO + 1}')
        a(km[1])
        a(f's_mov_b64 exec, s[{S_MPUB}:{S_MPUB + 1}]')
        a(f'buffer_store_dword v{X[7]}, v{V_P2}, {WS}, s{S_RBC} offen {sf}')
        a('s_mov_b64 exec, 1')
        a(f'buffer_store_dwordx2 v[{X[6]}:{X[6] + 1}], v{V_ZERO}, {WS}, s{S_FLM} offen sc1')
        a('s_mov_b64 exec, -1')
        rest = km[2:]
        if self.mode != 'T':
            chk = self.kv_check(f's{S_T2}')
            seq = interleave(rest[:4], chk, 3)
            rest = rest[4:]
            for x in seq:
                a(x)
            lok = self.L('L_kvok')
            a(f's_cbranch_scc0 {lok}')
            self.kv_wait(f's{S_T2}')
            a(f'{lok}:')
        adv = [f's_cmp_lt_u32 s{S_STEP}, 63', f's_cselect_b32 s{S_T}, {32 * 16384}, 0', f's_add_u32 s{S_KVO}, s{S_KVO}, s{S_T}']
        krd = [f'ds_read_b128 {q(X[j])}, v{V_KR} offset:{L_K + j * 1024}' for j in range(8)]
        qsum = self.halves(Q0, Q1) + [f'ds_write_b64 v{V_TW}, v[{Q0}:{Q0 + 1}] offset:{L_TQ}']
        fill = adv + self.kv_loads(V_VN) + ([self.flag_load()] if self.mode != 'T' else []) + qsum + krd
        for x in interleave(rest, fill, 3):
            a(x)
        self.stamp(1)
        vm = []
        for k in range(8):
            vm += [mm(V0, k, wv(0, k)), mm(V1, k, wv(1, k))]
        ksum = self.halves(K0, K1) + [f'ds_write_b64 v{V_TW}, v[{K0}:{K0 + 1}] offset:{L_TK}']
        for x in vm[:3]:
            a(x)
        for x in interleave(vm[3:8], ksum, 3):
            a(x)
        a('s_waitcnt lgkmcnt(0)')
        a('s_barrier')
        FQ = [Q0, Q1, K0, K1]
        FK = [M[0], M[1], M[2], M[3]]
        frd = []
        for k in range(4):
            for hh in range(2):
                frd.append(f'ds_read_b64_tr_b16 v[{FQ[k] + 2 * hh}:{FQ[k] + 2 * hh + 1}], v{V_FR} offset:{L_TQ + k * 512 + hh * 256}')
        for k in range(4):
            for hh in range(2):
                frd.append(f'ds_read_b64_tr_b16 v[{FK[k] + 2 * hh}:{FK[k] + 2 * hh + 1}], v{V_FR} offset:{L_TK + k * 512 + hh * 256}')
        for x in interleave(vm[8:], frd, 2):
            a(x)
        for hh in range(2):
            a(f'ds_read_b64_tr_b16 v[{M[7] + 2 * hh}:{M[7] + 2 * hh + 1}], v{V_FO} offset:{L_TK + hh * 256}')
        self.stamp(2)
        S0, S1, S2 = M[4], M[5], M[6]
        PLO, PHI, PM, ONES = X[0], X[1], X[2], X[3]
        TM = X[2] + 2

        def d32(d, av, b, first):
            return f'v_mfma_f32_16x16x32_bf16 {q(d)}, {q(av)}, {q(b)}, {"0" if first else q(d)}'
        a('s_waitcnt lgkmcnt(10)')
        sx0 = [d32(S0, X[k], FQ[k], k == 0) for k in range(4)]
        sx1 = [d32(S1, X[4 + k], FQ[k], k == 0) for k in range(4)]
        sm = [d32(S2, FK[k], FQ[k], k == 0) for k in range(4)]
        vsum = self.halves(V0, V1)
        for x in sx0[:2]:
            a(x)
        for x in interleave(sx0[2:] + sx1, vsum, 2):
            a(x)
        a('s_waitcnt lgkmcnt(0)')
        zp = [f'v_mov_b64 v[{r}:{r + 1}], 0' for r in (PLO, PLO + 2, PHI, PHI + 2, PM)]
        zp += [f'v_mov_b32 v{ONES + r}, 0x3f803f80' for r in range(4)]
        for x in interleave(sm, zp, 2):
            a(x)
        a(f'buffer_store_dwordx2 v[{V0}:{V0 + 1}], v{V_L8}, {WS}, s{S_KVM} offen offset:2048 sc1')
        a(f's_mov_b64 exec, s[{S_MLO}:{S_MLO + 1}]')
        a(f'buffer_store_dwordx4 {q(M[7])}, v{V_KM}, {WS}, s{S_KVM} offen sc1')
        a('s_mov_b64 exec, -1')
        a(f's_add_u32 s{S_KVM}, s{S_KVM}, {32 * 4096}')
        a(f's_cmp_eq_u32 s{S_STEP}, 63')
        a('s_cbranch_scc1 L_T_fin')
        self.stamp(3)
        OCT = [M[0], M[2], Q0, K0, X[4], X[6], V0, V_VC]

        def wo_rd(j, oct_):
            return [f'ds_read_b128 {q(oct_ + 4 * hh)}, v{V_WO} offset:{(j * 2 + hh) * 1024}' for hh in range(2)]
        pre = []
        for j in (4, 5, 0, 1, 2, 3):
            pre += wo_rd(j, OCT[j])
        sv = [S0 + r for r in range(4)] + [S1 + r for r in range(4)] + [S2 + r for r in range(4)]
        a(f'v_max3_f32 v{TM}, v{sv[0]}, v{sv[1]}, v{sv[2]}')
        a(f'v_max3_f32 v{TM}, v{sv[3]}, v{sv[4]}, v{TM}')
        a(f'v_max3_f32 v{TM}, v{sv[5]}, v{sv[6]}, v{TM}')
        for x in pre[:4]:
            a(x)
        a(f'v_max3_f32 v{TM}, v{sv[7]}, v{sv[8]}, v{TM}')
        a(f'v_max3_f32 v{TM}, v{sv[9]}, v{sv[10]}, v{TM}')
        a(f'v_max_f32 v{TM}, v{sv[11]}, v{TM}')
        a(f'v_mov_b32 v{TM + 1}, v{TM}')
        a(pre[4]); a(pre[5])
        a(f'v_permlane16_swap_b32 v{TM}, v{TM + 1}')
        a(f'v_max_f32 v{TM}, v{TM}, v{TM + 1}')
        a(f'v_mov_b32 v{TM + 1}, v{TM}')
        a(pre[6]); a(pre[7])
        a(f'v_permlane32_swap_b32 v{TM}, v{TM + 1}')
        a(f'v_max_f32 v{TM}, v{TM}, v{TM + 1}')
        a(f'v_mul_f32 v{TM}, s{S_NC}, v{TM}')
        for r in sv:
            a(f'v_fma_f32 v{r}, v{r}, s{S_C}, v{TM}')
        for r in sv:
            a(f'v_exp_f32 v{r}, v{r}')
        a(f's_mov_b64 exec, s[{S_MLO}:{S_MLO + 1}]')
        for r in range(4):
            a(f'v_cvt_pk_bf16_f32 v{PLO + r}, v{sv[2 * r]}, v{sv[2 * r + 1]}')
        a(f's_mov_b64 exec, s[{S_MHI}:{S_MHI + 1}]')
        for r in range(4):
            a(f'v_cvt_pk_bf16_f32 v{PHI + r}, v{sv[2 * r]}, v{sv[2 * r + 1]}')
        a(f's_mov_b64 exec, s[{S_MM}:{S_MM + 1}]')
        for r in range(2):
            a(f'v_cvt_pk_bf16_f32 v{PM + r}, v{sv[8 + 2 * r]}, v{sv[8 + 2 * r + 1]}')
        a('s_mov_b64 exec, -1')
        self.stamp(4)
        OA, Z = V1, M[7]
        a(d32(Z, ONES, PLO, True))
        a(pre[8]); a(pre[9])
        a(d32(OA, V_VC, PLO, True))
        a(pre[10]); a(pre[11])
        a(d32(Z, ONES, PHI, False))
        a(d32(OA, V_VC + 4, PHI, False))
        a(f'v_mfma_f32_16x16x16_bf16 {q(Z)}, v[{ONES}:{ONES + 1}], v[{PM}:{PM + 1}], {q(Z)}')
        a(f'v_mfma_f32_16x16x16_bf16 {q(OA)}, v[{V0}:{V0 + 1}], v[{PM}:{PM + 1}], {q(OA)}')
        for x in wo_rd(7, OCT[7]):
            a(x)
        JA = [X[0], X[1], X[2], X[3]]
        for r in JA[:2]:
            a(f'v_mov_b64 v[{r}:{r + 1}], 0')
            a(f'v_mov_b64 v[{r + 2}:{r + 3}], 0')
        a(f'v_rcp_f32 v{Z}, v{Z}')
        for r in range(4):
            a(f'v_mul_f32 v{OA + r}, v{OA + r}, v{Z}')
        a(f'v_cvt_pk_bf16_f32 v{S2}, v{OA}, v{OA + 1}')
        a(f'v_cvt_pk_bf16_f32 v{S2 + 1}, v{OA + 2}, v{OA + 3}')
        a(f'ds_write_b64 v{V_OW}, v[{S2}:{S2 + 1}] offset:{L_OX}')
        for r in JA[2:]:
            a(f'v_mov_b64 v[{r}:{r + 1}], 0')
            a(f'v_mov_b64 v[{r + 2}:{r + 3}], 0')
        a('s_waitcnt lgkmcnt(0)')
        a('s_barrier')
        OF = [S0, S1]
        for sg in range(2):
            a(f'ds_read_b128 {q(OF[sg])}, v{V_L16} offset:{L_OX + sg * 1024}')
        for x in wo_rd(6, OCT[6]):
            a(x)
        self.stamp(5)
        JA += [X[4], X[5], X[6], X[7]]
        octof = {j: OCT[j] for j in range(8)}
        reload = {0: 8, 1: 9, 2: 10, 3: 11, 6: 12, 7: 13, 8: 14, 9: 15}
        OUT = [S2, M[7]]
        pend = []
        pend += ['o0', 'o1', 6, 6]

        def wait_for(tag):
            if tag in pend:
                last = len(pend) - 1 - pend[::-1].index(tag)
                n = len(pend) - 1 - last
                a(f's_waitcnt lgkmcnt({n})')
                del pend[:last + 1]

        def hsum(d0, d1):
            o = [f'v_permlane32_swap_b32 v{d0 + r}, v{d1 + r}' for r in range(4)]
            o += [f'v_add_f32 v{d0 + r}, v{d0 + r}, v{d1 + r}' for r in range(4)]
            return o

        def pack(sg2):
            da, db, o = JA[4 * sg2], JA[4 * sg2 + 2], OUT[sg2]
            x = [f'v_cvt_pk_bf16_f32 v{o + r}, v{da + r}, v{db + r}' for r in range(4)]
            x += [f'v_min_u32 v{o + r}, -2, v{o + r}' for r in range(4)]
            x.append(f'buffer_store_dwordx4 {q(o)}, v{V_P1}, {WS}, s{(S_RA, S_RA1)[sg2]} offen {sf}')
            return x
        fill = []
        for j in range(16):
            wait_for(f'o{j & 1}')
            wait_for(j)
            a(smf(JA[j >> 1], OF[j & 1], octof[j], 'v'))
            if j in reload:
                octof[reload[j]] = octof[j]
                for x in wo_rd(reload[j], octof[j]):
                    a(x)
                pend.extend([reload[j]] * 2)
            if j in (4, 5):
                o = octof[j]
                for r in range(4):
                    a(f'v_mov_b64 v[{o + 2 * r}:{o + 2 * r + 1}], 0')
            if j == 6:
                fill += hsum(JA[0], JA[1])
            if j == 10:
                fill += hsum(JA[2], JA[3]) + pack(0)
            if j == 14:
                fill += hsum(JA[4], JA[5])
            for _ in range(2 if j < 10 else 4):
                if fill:
                    a(fill.pop(0))
        for x in fill:
            a(x)
        for x in hsum(JA[6], JA[7]) + pack(1):
            a(x)
        self.stamp(6)
        SEL, G0, G1, R = M[2], M[4], M[5], M[3]
        lp = f'L_T_p1_{tag}'
        for r in range(4):
            a(f'v_mov_b32 v{SEL + r}, 0')
        for r in range(4):
            a(f'v_mov_b32_dpp v{SEL + r}, v{V_SEL} quad_perm:[0,1,2,3] row_mask:0xf bank_mask:{hex(1 << r)}')
        for r in (Q0, Q1, K0, K1, V0, V1):
            a(f'v_mov_b64 v[{r}:{r + 1}], 0')
            a(f'v_mov_b64 v[{r + 2}:{r + 3}], 0')
        a(f'v_xor_b32 v{V_KR}, 0x2000, v{V_KR}')
        if self.o.get('sl1'):
            a(f's_sleep {self.o["sl1"]}')
        a(f'{lp}:')
        a(f'buffer_load_dwordx4 {q(G0)}, v{V_IMG}, {WS}, s{S_GAP} offen sc1')
        a(f'buffer_load_dwordx4 {q(G1)}, v{V_IMG}, {WS}, s{S_GAP} offen offset:1024 sc1')
        self.spin_check()
        a('s_waitcnt vmcnt(1)')
        a(d32(R, SEL, G0, True))
        a(f'v_max3_u32 v{X[0]}, v{G0}, v{G0 + 1}, v{G0 + 2}')
        a('s_waitcnt vmcnt(0)')
        a(d32(R, SEL, G1, False))
        a(f'v_max3_u32 v{X[0]}, v{G0 + 3}, v{G1}, v{X[0]}')
        a(f'v_max3_u32 v{X[0]}, v{G1 + 1}, v{G1 + 2}, v{X[0]}')
        a(f'v_max_u32 v{X[0]}, v{G1 + 3}, v{X[0]}')
        a(f'v_cmp_eq_u32 vcc, -1, v{X[0]}')
        a(f's_cbranch_vccnz {lp}')
        for sh in (8, 4):
            for r in range(2):
                a(f'v_add_f32_dpp v{R + r}, v{R + r}, v{R + r} row_ror:{sh} row_mask:0xf bank_mask:0xf')
        a(f'v_cvt_pk_bf16_f32 v{R}, v{R}, v{R + 1}')
        a(f's_mov_b64 exec, s[{S_MPUB}:{S_MPUB + 1}]')
        a(f'v_min_u32 v{R}, -2, v{R}')
        a(f'buffer_store_dword v{R}, v{V_P2}, {WS}, s{S_RB} offen {sf}')
        a('s_mov_b64 exec, -1')
        self.stamp(7)
        for r in range(4):
            a(f'v_mov_b64 v[{V_VC + 2 * r}:{V_VC + 2 * r + 1}], v[{V_VN + 2 * r}:{V_VN + 2 * r + 1}]')
        if self.o.get('prof'):
            self.prof_acc()
        a(f's_add_u32 s{S_STEP}, s{S_STEP}, 1')
        if self.o.get('sl2'):
            a(f's_sleep {self.o["sl2"]}')
        lp = f'L_T_p2_{tag}'
        a(f'{lp}:')
        a(f'buffer_load_dwordx4 {q(M[0])}, v{V_IMG}, {WS}, s{S_RB} offen sc1')
        a(f'buffer_load_dwordx4 {q(M[1])}, v{V_IMG}, {WS}, s{S_RB} offen offset:1024 sc1')
        self.spin_check()
        a('s_waitcnt vmcnt(1)')
        a(f'v_max3_u32 v{X[0]}, v{M[0]}, v{M[0] + 1}, v{M[0] + 2}')
        a('s_waitcnt vmcnt(0)')
        a(f'v_max3_u32 v{X[0]}, v{M[0] + 3}, v{M[1]}, v{X[0]}')
        a(f'v_max3_u32 v{X[0]}, v{M[1] + 1}, v{M[1] + 2}, v{X[0]}')
        a(f'v_max_u32 v{X[0]}, v{M[1] + 3}, v{X[0]}')
        a(f'v_cmp_eq_u32 vcc, -1, v{X[0]}')
        a(f's_cbranch_vccnz {lp}')
        a(f's_branch L_T_loop_{tag}')

    def prof_acc(self):
        a = self.a
        a('s_waitcnt lgkmcnt(0)')
        for k in range(8):
            a(f'v_mov_b32 v{X[2] + k}, s{S_ST + 2 * k}')
        a(f's_lshl_b32 s{S_T}, s{S_SLOT}, 2')
        a(f's_add_u32 s{S_T}, s{S_T}, s{S_WAVE}')
        a(f's_lshl_b32 s{S_T}, s{S_T}, 6')
        a(f's_add_u32 s{S_T}, s{S_T}, s{S_STEP}')
        a(f's_lshl_b32 s{S_T}, s{S_T}, 5')
        a(f's_add_u32 s{S_T}, s{S_T}, {WS_DBG}')
        a('s_mov_b64 exec, 1')
        a(f'buffer_store_dwordx4 {q(X[2])}, v{V_ZERO}, {srd(SRD_WS)}, s{S_T} offen')
        a(f'buffer_store_dwordx4 {q(X[3])}, v{V_ZERO}, {srd(SRD_WS)}, s{S_T} offen offset:16')
        a('s_mov_b64 exec, -1')
```

```python
import sys
sys.path.insert(0, 'dev')
from asmlib import Asm, interleave

NAME = 'gated_mix__memory_aug_recurrent_mem_tr__glu_gated_reglu__prompt'
KN = NAME + '_kernel'
MB = 1 << 20
WS_KV = 0
WS_Q = 32 * MB
WS_O = 48 * MB
WS_H = 64 * MB
H_TS = 57344
WS_KVM = 72 * MB
WS_RA = 80 * MB
WS_RB = 81 * MB
WS_FL = 82 * MB
FL_QKV = WS_FL
FL_H = WS_FL + 0x4000
FL_M = WS_FL + 0x8000
FL_O = WS_FL + 0xC000
WS_DBG = 84 * MB
WS_SIZE = 256 * MB
LDS_BYTES = 163840
DBG_TEAMCNT = 192
DBG_TEAMBAR = 196
DBG_NONCE = 208

KA_X, KA_MEM0, KA_WQ, KA_WK, KA_WV, KA_WO, KA_SEG, KA_BX, KA_WG, KA_WU, KA_WD, KA_GW, KA_OUT, KA_DBG, KA_WS = [8 * i for i in range(15)]

SRD_X, SRD_WS, SRD_A, SRD_B, SRD_C = 4, 8, 12, 16, 20
S_DBG = 24
S_WAVE, S_GRP, S_SLOT, S_MIX = 26, 27, 28, 29
S_NONCE = 30
S_SPIN = 100
SPIN_LIMIT = 400000


def srd(n):
    return f's[{n}:{n + 3}]'


def q(base, n=4, k='v'):
    return f'{k}[{base}:{base + n - 1}]'


class Gen:
    def __init__(self, mode='full', opts=None):
        self.a = Asm()
        self.mode = mode
        self.o = opts or {}
        self.uid = 0

    def L(self, p='L'):
        self.uid += 1
        return f'{p}_{self.uid}'

    def mk_srd(self, n, lo, hi, size):
        a = self.a
        a(f's_mov_b32 s{n}, {lo}')
        a(f's_and_b32 s{n + 1}, {hi}, 0xffff')
        a(f's_mov_b32 s{n + 2}, {size}')
        a(f's_mov_b32 s{n + 3}, 0x20000')

    def prologue(self):
        a = self.a
        a('s_cmp_ge_u32 s2, 256')
        a('s_cbranch_scc1 L_end')
        a(f's_load_dwordx2 s[32:33], s[0:1], {KA_X}')
        a(f's_load_dwordx2 s[{S_DBG}:{S_DBG + 1}], s[0:1], {KA_DBG}')
        a(f's_load_dwordx2 s[34:35], s[0:1], {KA_WS}')
        a(f's_getreg_b32 s{S_GRP}, hwreg(HW_REG_XCC_ID, 0, 3)')
        a('v_lshrrev_b32 v1, 6, v0')
        a('v_and_b32 v0, 63, v0')
        a(f'v_readfirstlane_b32 s{S_WAVE}, v1')
        a(f's_mov_b32 s{S_MIX}, 0')
        a(f's_mov_b32 s{S_SPIN}, {SPIN_LIMIT}')
        a('s_waitcnt lgkmcnt(0)')
        self.mk_srd(SRD_X, 's32', 's33', 2048 * 512 * 2)
        self.mk_srd(SRD_WS, 's34', 's35', WS_SIZE)
        a(f's_cmp_lg_u32 s{S_WAVE}, 0')
        a('s_cbranch_scc1 L_tk_done')
        a('s_mov_b64 exec, 1')
        a('s_cmp_lg_u32 s2, 0')
        a('s_cbranch_scc1 L_tk_loop')
        a('s_memrealtime s[36:37]')
        a('s_waitcnt lgkmcnt(0)')
        a('s_mul_i32 s37, s36, 0x9E3779B1')
        a('s_or_b32 s37, s37, 1')
        a('v_mov_b32 v2, s36')
        a('v_mov_b32 v3, s37')
        a(f'v_mov_b32 v4, {DBG_NONCE}')
        a(f'global_store_dwordx2 v4, v[2:3], s[{S_DBG}:{S_DBG + 1}] sc1')
        a('L_tk_loop:')
        a(f's_mul_i32 s36, s{S_GRP}, 24')
        a('s_sub_u32 s36, s36, 24')
        a(f's_cmp_eq_u32 s{S_GRP}, 0')
        a(f's_cselect_b32 s36, {DBG_TEAMCNT}, s36')
        a('v_mov_b32 v2, s36')
        a('v_mov_b32 v3, 1')
        a(f'global_atomic_add v4, v2, v3, s[{S_DBG}:{S_DBG + 1}] sc0')
        a('s_waitcnt vmcnt(0)')
        a(f'v_readfirstlane_b32 s{S_SLOT}, v4')
        a(f's_cmp_lt_u32 s{S_SLOT}, 32')
        a('s_cbranch_scc1 L_tk_got')
        a(f's_add_u32 s{S_GRP}, s{S_GRP}, 1')
        a(f's_and_b32 s{S_GRP}, s{S_GRP}, 7')
        a(f's_add_u32 s{S_MIX}, s{S_MIX}, 1')
        a(f's_cmp_lt_u32 s{S_MIX}, 8')
        a('s_cbranch_scc1 L_tk_loop')
        a('L_tk_got:')
        a(f's_lshl_b32 s36, s{S_GRP}, 8')
        a(f's_lshl_b32 s37, s{S_MIX}, 16')
        a(f's_or_b32 s36, s36, s{S_SLOT}')
        a('s_or_b32 s36, s36, s37')
        a('v_mov_b32 v2, s36')
        a('v_mov_b32 v3, 0')
        a('ds_write_b32 v3, v2')
        a('s_waitcnt lgkmcnt(0)')
        a('s_mov_b64 exec, -1')
        a('L_tk_done:')
        a('s_barrier')
        a('v_mov_b32 v3, 0')
        a('ds_read_b32 v2, v3')
        a('s_waitcnt lgkmcnt(0)')
        a('v_readfirstlane_b32 s36, v2')
        a('s_barrier')
        a(f's_and_b32 s{S_SLOT}, s36, 0xff')
        a(f's_bfe_u32 s{S_GRP}, s36, 0x80008')
        a(f's_lshr_b32 s{S_MIX}, s36, 16')
        a(f's_cmp_ge_u32 s{S_SLOT}, 32')
        a('s_cbranch_scc1 L_end')

    def spin_check(self):
        a = self.a
        a(f's_sub_u32 s{S_SPIN}, s{S_SPIN}, 1')
        a('s_cbranch_scc1 L_end')

    def get_nonce(self, vt):
        a = self.a
        l = self.L('L_nonce')
        a(f'v_mov_b32 v{vt + 2}, {DBG_NONCE}')
        a(f'{l}:')
        self.spin_check()
        a(f'global_load_dwordx2 v[{vt}:{vt + 1}], v{vt + 2}, s[{S_DBG}:{S_DBG + 1}] sc1')
        a('s_waitcnt vmcnt(0)')
        a(f'v_readfirstlane_b32 s{S_NONCE}, v{vt}')
        a(f'v_readfirstlane_b32 s{S_NONCE + 1}, v{vt + 1}')
        a(f's_mul_i32 s36, s{S_NONCE}, 0x9E3779B1')
        a('s_or_b32 s36, s36, 1')
        a(f's_cmp_eq_u32 s36, s{S_NONCE + 1}')
        a(f's_cbranch_scc0 {l}')

    def slab_setup(self, v_voff, v_a0, v_a1, s_stride, order, vt):
        a = self.a
        a(f'v_lshrrev_b32 v{vt}, 2, v0')
        a(f'v_mul_lo_u32 v{v_voff}, v{vt}, {s_stride}')
        a(f'v_lshrrev_b32 v{vt}, 4, v0')
        a(f'v_lshrrev_b32 v{vt + 1}, 5, v0')
        a(f'v_xor_b32 v{vt}, v{vt}, v{vt + 1}')
        a(f'v_and_b32 v{vt}, 1, v{vt}')
        a(f'v_lshlrev_b32 v{vt}, 1, v{vt}')
        a(f'v_and_b32 v{vt + 1}, 3, v0')
        a(f'v_xor_b32 v{vt}, v{vt}, v{vt + 1}')
        a(f'v_lshl_add_u32 v{v_voff}, v{vt}, 4, v{v_voff}')
        if v_a0 is None:
            return
        a(f's_mul_i32 s36, s{S_WAVE}, 40960')
        a(f'v_lshrrev_b32 v{vt}, 4, v0')
        a(f'v_bfe_u32 v{vt + 1}, v0, 2, 2')
        if order == 'nat':
            a(f'v_lshl_add_u32 v{vt + 1}, v{vt}, 3, v{vt + 1}')
            a(f'v_and_b32 v{vt}, 1, v{vt}')
        else:
            a(f'v_lshl_add_u32 v{vt + 1}, v{vt}, 2, v{vt + 1}')
            a(f'v_lshrrev_b32 v{v_a0}, 1, v{vt}')
            a(f'v_xor_b32 v{vt}, v{vt}, v{v_a0}')
            a(f'v_and_b32 v{vt}, 1, v{vt}')
        a(f'v_lshlrev_b32 v{v_a0}, 6, v{vt + 1}')
        a(f'v_lshl_add_u32 v{v_a0}, v{vt}, 5, v{v_a0}')
        a(f'v_and_b32 v{vt}, 3, v0')
        a(f'v_lshl_add_u32 v{v_a0}, v{vt}, 3, v{v_a0}')
        a(f'v_add_u32 v{v_a0}, s36, v{v_a0}')
        a(f'v_xor_b32 v{v_a1}, 32, v{v_a0}')

    def slab_load(self, chunks, v_a0, v_a1, order, s_m0base, s_tmp, pre_out=0, post_issue=None):
        a = self.a
        NSL = 5
        issued = []

        def issue(ci):
            ch = chunks[ci]
            for j in range(ch['nd']):
                a(f's_add_u32 m0, s{s_m0base}, {(ci % NSL) * 8192 + j * 1024}')
                a(ch['soff'](j, s_tmp))
                a(f"buffer_load_dwordx4 v{ch['voff']}, {srd(ch['srd'])}, s{s_tmp} offen lds")
            issued.append(ch['nd'])
        n = len(chunks)
        for ci in range(min(NSL, n)):
            issue(ci)
        extra = 0
        if n <= NSL and post_issue:
            extra = post_issue()
        for ci in range(n):
            later = sum(issued[ci + 1:]) + extra
            a(f's_waitcnt vmcnt({min(later, 63)})')
            ch = chunks[ci]
            base = (ci % NSL) * 8192
            for kk in range(ch['nd'] // 2):
                for t in range(2):
                    kind, r = ch['dst'](kk, t)
                    if order == 'nat':
                        first = (v_a0, v_a1)[t]
                        second = (v_a1, v_a0)[t]
                        o2 = 256
                    else:
                        first = second = (v_a0, v_a1)[t]
                        o2 = 1024
                    a(f'ds_read_b64_tr_b16 {kind}[{r}:{r + 1}], v{first} offset:{base + kk * 2048}')
                    a(f'ds_read_b64_tr_b16 {kind}[{r + 2}:{r + 3}], v{second} offset:{base + kk * 2048 + o2}')
            if ci + NSL < n:
                a('s_waitcnt lgkmcnt(0)')
                issue(ci + NSL)
                if ci + NSL == n - 1 and post_issue:
                    extra = post_issue()
        a('s_waitcnt lgkmcnt(0)')

    def phase_a(self):
        a = self.a
        S_W, S_TYPE, S_CG, S_PART, S_NP, S_STR, S_STR16 = 40, 41, 42, 43, 44, 45, 46
        S_O0, S_O1, S_OSTEP, S_FLG, S_XOFF, S_XSTEP, S_B, S_NB = 47, 48, 49, 50, 51, 52, 53, 54
        S_SR, S_SW, S_M0B, S_T, S_TTS = 55, 56, 57, 58, 59
        a(f's_sub_u32 s{S_W}, s{S_GRP}, 1')
        a(f's_lshl_b32 s{S_W}, s{S_W}, 5')
        a(f's_add_u32 s{S_W}, s{S_W}, s{S_SLOT}')
        a(f's_cmp_ge_u32 s{S_W}, 218')
        a('s_cbranch_scc1 L_A_done')
        a(f's_load_dwordx4 s[60:63], s[0:1], {KA_WQ}')
        a(f's_load_dwordx2 s[64:65], s[0:1], {KA_WV}')
        a(f's_load_dwordx4 s[68:71], s[0:1], {KA_WG}')
        a(f's_cmp_lt_u32 s{S_W}, 128')
        a('s_cbranch_scc0 L_A_dec2')
        a(f's_lshr_b32 s{S_CG}, s{S_W}, 2')
        a(f's_and_b32 s{S_PART}, s{S_W}, 3')
        a(f's_mov_b32 s{S_NP}, 4')
        a(f's_lshr_b32 s{S_TYPE}, s{S_CG}, 4')
        a(f's_and_b32 s{S_CG}, s{S_CG}, 15')
        a('s_branch L_A_dec3')
        a('L_A_dec2:')
        a(f's_cmp_lt_u32 s{S_W}, 176')
        a(f's_cselect_b32 s{S_TYPE}, 2, 3')
        a(f's_cselect_b32 s36, 0, 48')
        a(f's_sub_u32 s36, s{S_W}, s36')
        a('s_sub_u32 s36, s36, 128')
        a(f's_mul_i32 s{S_CG}, s36, 0x5556')
        a(f's_lshr_b32 s{S_CG}, s{S_CG}, 16')
        a(f's_mul_i32 s37, s{S_CG}, 3')
        a(f's_sub_u32 s{S_PART}, s36, s37')
        a(f's_mov_b32 s{S_NP}, 3')
        a('L_A_dec3:')
        a('s_waitcnt lgkmcnt(0)')
        a(f's_cmp_eq_u32 s{S_PART}, 0')
        a(f's_cselect_b32 s{S_NB}, 22, 21')
        a(f's_cmp_eq_u32 s{S_NP}, 4')
        a(f's_cselect_b32 s{S_NB}, 16, s{S_NB}')
        a(f's_lshl_b32 s{S_XOFF}, s{S_PART}, 15')
        a(f's_lshl_b32 s{S_XSTEP}, s{S_NP}, 15')
        a(f's_cmp_eq_u32 s{S_TYPE}, 3')
        a('s_cbranch_scc1 L_A_setf')
        a(f's_cmp_eq_u32 s{S_TYPE}, 0')
        a('s_cselect_b32 s66, s62, s60')
        a('s_cselect_b32 s67, s63, s61')
        a(f's_cmp_eq_u32 s{S_TYPE}, 1')
        a('s_cselect_b32 s66, s64, s66')
        a('s_cselect_b32 s67, s65, s67')
        a(f's_lshl_b32 s36, s{S_CG}, 9')
        a(f's_lshl_b32 s37, s{S_WAVE}, 7')
        a('s_add_u32 s36, s36, s37')
        a('s_add_u32 s66, s66, s36')
        a('s_addc_u32 s67, s67, 0')
        a(f's_sub_u32 s37, {4 * MB}, s36')
        self.mk_srd(SRD_A, 's66', 's67', 's37')
        a('s_add_u32 s66, s66, 64')
        a('s_addc_u32 s67, s67, 0')
        a('s_sub_u32 s37, s37, 64')
        self.mk_srd(SRD_B, 's66', 's67', 's37')
        a(f's_mov_b32 s{S_STR}, 8192')
        a(f's_lshr_b32 s36, s{S_WAVE}, 1')
        a(f's_lshl_b32 s37, s{S_CG}, 1')
        a('s_add_u32 s36, s36, s37')
        a(f's_and_b32 s37, s{S_WAVE}, 1')
        a(f's_lshl_b32 s{S_FLG}, s36, 8')
        a(f's_lshl_b32 s38, s{S_TYPE}, 6')
        a(f's_add_u32 s{S_FLG}, s{S_FLG}, s38')
        a('s_lshl_b32 s38, s37, 5')
        a(f's_add_u32 s{S_FLG}, s{S_FLG}, s38')
        a(f's_lshl_b32 s38, s{S_PART}, 3')
        a(f's_add_u32 s{S_FLG}, s{S_FLG}, s38')
        a(f's_add_u32 s{S_FLG}, s{S_FLG}, {FL_QKV}')
        a(f's_lshl_b32 s38, s{S_PART}, 5')
        a('s_add_u32 s38, s38, s36')
        a(f's_cmp_eq_u32 s{S_TYPE}, 2')
        a('s_cselect_b32 s39, 13, 14')
        a(f's_lshl_b32 s{S_O0}, s38, s39')
        a(f's_lshl_b32 s{S_OSTEP}, s{S_NP}, 5')
        a(f's_lshl_b32 s{S_OSTEP}, s{S_OSTEP}, s39')
        a(f's_cmp_eq_u32 s{S_TYPE}, 2')
        a(f's_cselect_b32 s38, {WS_Q}, {WS_KV}')
        a(f's_add_u32 s{S_O0}, s{S_O0}, s38')
        a(f's_cmp_eq_u32 s{S_TYPE}, 1')
        a('s_cselect_b32 s38, 12, 11')
        a('s_lshl_b32 s38, s37, s38')
        a(f's_add_u32 s{S_O0}, s{S_O0}, s38')
        a(f's_cmp_eq_u32 s{S_TYPE}, 1')
        a('s_cselect_b32 s38, 8192, 0')
        a(f's_add_u32 s{S_O0}, s{S_O0}, s38')
        a(f's_mov_b32 s{S_TTS}, 4096')
        a('s_branch L_A_set_done')
        a('L_A_setf:')
        a(f's_lshl_b32 s38, s{S_CG}, 2')
        a(f's_add_u32 s38, s38, s{S_WAVE}')
        a('s_lshl_b32 s36, s38, 6')
        a(f's_sub_u32 s37, {512 * 1792 * 2}, s36')
        a('s_add_u32 s66, s68, s36')
        a('s_addc_u32 s67, s69, 0')
        self.mk_srd(SRD_A, 's66', 's67', 's37')
        a('s_add_u32 s66, s70, s36')
        a('s_addc_u32 s67, s71, 0')
        self.mk_srd(SRD_B, 's66', 's67', 's37')
        a(f's_mov_b32 s{S_STR}, 3584')
        a(f's_lshl_b32 s{S_FLG}, s{S_PART}, 9')
        a('s_lshl_b32 s36, s38, 3')
        a(f's_add_u32 s{S_FLG}, s{S_FLG}, s36')
        a(f's_add_u32 s{S_FLG}, s{S_FLG}, {FL_H}')
        a(f's_mul_i32 s{S_O0}, s{S_PART}, {2 * H_TS}')
        a('s_lshl_b32 s36, s38, 10')
        a(f's_add_u32 s{S_O0}, s{S_O0}, s36')
        a(f's_add_u32 s{S_O0}, s{S_O0}, {WS_H}')
        a(f's_mov_b32 s{S_OSTEP}, {6 * H_TS}')
        a(f's_mov_b32 s{S_TTS}, {H_TS}')
        a('L_A_set_done:')
        a(f's_lshl_b32 s{S_STR16}, s{S_STR}, 4')
        V_VOFF, V_A0, V_A1 = 2, 3, 4
        self.slab_setup(V_VOFF, V_A0, V_A1, f's{S_STR}', 'nat', 5)
        a(f's_mul_i32 s{S_M0B}, s{S_WAVE}, 40960')
        chunks = []
        for c in range(4):
            for sl in range(2):
                def soff(j, st, c=c):
                    return f's_mul_i32 s{st}, s{S_STR16}, {c * 8 + j}'

                def dst(kk, t, c=c, sl=sl):
                    return 'a', ((2 * sl + t) * 16 + c * 4 + kk) * 4
                chunks.append(dict(srd=(SRD_A, SRD_B)[sl], voff=V_VOFF, soff=soff, nd=8, dst=dst))
        self.slab_load(chunks, V_A0, V_A1, 'nat', S_M0B, S_T)
        self.get_nonce(8)
        a('s_barrier')
        VX = 8
        VR = 16
        VC = 20
        VL16 = 24
        VFL = 26
        ACC = 32
        FR = 64
        OUT = 96
        for r in range(8):
            a(f's_lshl_b32 s36, s{S_WAVE}, 3')
            a(f's_add_u32 s36, s36, {r}')
            a('s_and_b32 s36, s36, 15')
            a(f'v_xor_b32 v{VX + r}, s36, v0')
            a(f'v_lshlrev_b32 v{VX + r}, 4, v{VX + r}')
            a(f's_lshl_b32 s36, s{S_WAVE}, 13')
            a(f's_add_u32 s36, s36, {(r >> 2) * 4096}')
            a(f'v_add_u32 v{VX + r}, s36, v{VX + r}')
        a('v_and_b32 v5, 15, v0')
        a('v_lshrrev_b32 v6, 4, v0')
        for kl in range(4):
            a(f'v_add_u32 v7, {4 * kl}, v6')
            a('v_xor_b32 v7, v7, v5')
            a('v_lshlrev_b32 v7, 4, v7')
            a(f'v_lshl_add_u32 v{VR + kl}, v5, 10, v7')
        a(f'v_lshlrev_b32 v{VL16}, 4, v0')
        a('v_mov_b32 v25, 0')
        a(f'v_mov_b32 v{VFL + 1}, s{S_NONCE + 1}')
        a(f's_lshl_b32 s{S_M0B}, s{S_WAVE}, 13')

        def dma_block(s_slot):
            out = []
            for r in range(8):
                if r % 4 == 0:
                    out.append(f's_add_u32 s{S_T}, s{S_M0B}, s{s_slot}')
                    out.append(f's_add_u32 m0, s{S_T}, {(r >> 2) * 4096}')
                out.append(f'buffer_load_dwordx4 v{VX + r}, {srd(SRD_X)}, s{S_XOFF} offen offset:{(r & 3) * 1024} lds')
            out.append(f's_add_u32 s{S_XOFF}, s{S_XOFF}, s{S_XSTEP}')
            out.append(f's_add_u32 s{s_slot}, s{s_slot}, 32768')
            out.append(f's_cmp_eq_u32 s{s_slot}, {3 * 32768}')
            out.append(f's_cselect_b32 s{s_slot}, 0, s{s_slot}')
            return out
        a(f's_mov_b32 s{S_SW}, 0')
        a(f's_mov_b32 s{S_SR}, 0')
        a(f's_mov_b32 s{S_B}, 0')
        for x in dma_block(S_SW) + dma_block(S_SW):
            a(x)
        a('s_waitcnt vmcnt(8)')
        a(f's_cmp_eq_u32 s{S_TYPE}, 1')
        a('s_cbranch_scc1 L_A_loopV')
        a(f's_cmp_eq_u32 s{S_TYPE}, 3')
        a('s_cbranch_scc1 L_A_loopF')
        for kind in ('K', 'V', 'F'):
            nst = 2 if kind == 'F' else 4
            a(f'L_A_loop{kind}:')
            a(f's_waitcnt vmcnt({9 + nst})')
            a('s_barrier')
            for kl in range(4):
                a(f'v_add_u32 v{VC + kl}, s{S_SR}, v{VR + kl}')

            def rd(k):
                return [f'ds_read_b128 {q(FR + ((k & 3) * 2 + tt) * 4)}, v{VC + (k & 3)} offset:{(k >> 2) * 256 + tt * 16384}' for tt in range(2)]
            for k in range(3):
                for x in rd(k):
                    a(x)
            a(f's_max_u32 s36, s{S_B}, 1')
            a('s_sub_u32 s36, s36, 1')
            a(f's_add_u32 s36, s36, s{S_NONCE}')
            a(f'v_mov_b32 v{VFL}, s36')
            a('s_mov_b64 exec, 1')
            a(f'buffer_store_dwordx2 v[{VFL}:{VFL + 1}], v25, {srd(SRD_WS)}, s{S_FLG} offen sc1')
            a('s_mov_b64 exec, -1')
            fill = dma_block(S_SW)
            for k in range(16):
                if k + 3 < 16:
                    for x in rd(k + 3):
                        a(x)
                a(f's_waitcnt lgkmcnt({min(6, (15 - k) * 2)})')
                ms = []
                for tt in range(2):
                    for t in range(4):
                        d = q(ACC + (t * 2 + tt) * 4)
                        w = q((t * 16 + k) * 4, 4, 'a')
                        x = q(FR + ((k & 3) * 2 + tt) * 4)
                        c = '0' if k == 0 else d
                        if kind == 'V':
                            ms.append(f'v_mfma_f32_16x16x32_bf16 {d}, {x}, {w}, {c}')
                        else:
                            ms.append(f'v_mfma_f32_16x16x32_bf16 {d}, {w}, {x}, {c}')
                for j, m in enumerate(ms):
                    a(m)
                    if fill and j % 2 == 1:
                        a(fill.pop(0))
            assert not fill
            a(f's_add_u32 s{S_SR}, s{S_SR}, 32768')
            a(f's_cmp_eq_u32 s{S_SR}, {3 * 32768}')
            a(f's_cselect_b32 s{S_SR}, 0, s{S_SR}')
            a(f's_add_u32 s{S_O1}, s{S_O0}, s{S_TTS}')

            def acc(t, tt, r):
                return ACC + (t * 2 + tt) * 4 + r
            if kind == 'K':
                for tt in range(2):
                    for u in range(2):
                        o = OUT + (tt * 2 + u) * 4
                        for hh in range(2):
                            for p in range(2):
                                a(f'v_cvt_pk_bf16_f32 v{o + hh * 2 + p}, v{acc(2 * u + hh, tt, 2 * p)}, v{acc(2 * u + hh, tt, 2 * p + 1)}')
                        a(f'buffer_store_dwordx4 {q(o)}, v{VL16}, {srd(SRD_WS)}, s{(S_O0, S_O1)[tt]} offen offset:{u * 1024} sc1')
            elif kind == 'V':
                for t in range(4):
                    o = OUT + t * 4
                    for tt in range(2):
                        for p in range(2):
                            a(f'v_cvt_pk_bf16_f32 v{o + tt * 2 + p}, v{acc(t, tt, 2 * p)}, v{acc(t, tt, 2 * p + 1)}')
                    a(f'buffer_store_dwordx4 {q(o)}, v{VL16}, {srd(SRD_WS)}, s{S_O0} offen offset:{t * 1024} sc1')
            else:
                for tt in range(2):
                    o = OUT + tt * 4
                    for hh in range(2):
                        for r in range(4):
                            a(f'v_max_f32 v{acc(hh, tt, r)}, 0, v{acc(hh, tt, r)}')
                        for r in range(4):
                            a(f'v_mul_f32 v{acc(hh, tt, r)}, v{acc(hh, tt, r)}, v{acc(2 + hh, tt, r)}')
                        for p in range(2):
                            a(f'v_cvt_pk_bf16_f32 v{o + hh * 2 + p}, v{acc(hh, tt, 2 * p)}, v{acc(hh, tt, 2 * p + 1)}')
                    a(f'buffer_store_dwordx4 {q(o)}, v{VL16}, {srd(SRD_WS)}, s{(S_O0, S_O1)[tt]} offen sc1')
            a(f's_add_u32 s{S_O0}, s{S_O0}, s{S_OSTEP}')
            a(f's_add_u32 s{S_B}, s{S_B}, 1')
            a(f's_cmp_lt_u32 s{S_B}, s{S_NB}')
            a(f's_cbranch_scc1 L_A_loop{kind}')
            if kind != 'F':
                a('s_branch L_A_fin')
        a('L_A_fin:')
        a('s_waitcnt vmcnt(0)')
        a(f's_add_u32 s36, s{S_NB}, s{S_NONCE}')
        a(f'v_mov_b32 v{VFL}, s36')
        a('s_mov_b64 exec, 1')
        a(f'buffer_store_dwordx2 v[{VFL}:{VFL + 1}], v25, {srd(SRD_WS)}, s{S_FLG} offen sc1')
        a('s_mov_b64 exec, -1')
        a('s_barrier')
        a('L_A_done:')

    def build(self):
        a = self.a
        self.prologue()
        a(f's_cmp_eq_u32 s{S_GRP}, 0')
        a('s_cbranch_scc1 L_team')
        if self.mode in ('full', 'A', 'AT'):
            self.phase_a()
        if self.mode in ('full', 'B'):
            self.phase_b()
        a('s_branch L_end')
        a('L_team:')
        if self.mode in ('full', 'T', 'AT'):
            self.team()
        a('L_end:')
        a('s_endpgm')
        n = a.fix_hazards()
        head = open('cdna_kernels/' + NAME + '.s.ref').read().split('; Override launch')[0]
        txt = head
        txt += f'; @launch grid=(256,1,1) block=(256,1,1) lds={LDS_BYTES}\n'
        txt += '.amdgcn_target "amdgcn-amd-amdhsa--gfx950"\n.text\n'
        txt += f'.globl {KN}\n.p2align 8\n.type {KN},@function\n{KN}:\n'
        txt += a.text()
        txt += f'''.section .rodata,"a"
.p2align 6
.amdhsa_kernel {KN}
  .amdhsa_next_free_vgpr 512
  .amdhsa_next_free_sgpr 102
  .amdhsa_accum_offset 256
  .amdhsa_group_segment_fixed_size 0
  .amdhsa_kernarg_size 120
  .amdhsa_user_sgpr_count 2
  .amdhsa_user_sgpr_kernarg_segment_ptr 1
  .amdhsa_system_sgpr_workgroup_id_x 1
.end_amdhsa_kernel
'''
        return txt


if __name__ == '__main__':
    mode = sys.argv[1] if len(sys.argv) > 1 else 'full'
    out = sys.argv[2] if len(sys.argv) > 2 else f'k_{mode}.s'
    from gen_team import TeamMixin
    from gen_b import PhaseBMixin

    class G(Gen, TeamMixin, PhaseBMixin):
        pass
    opts = dict(kv.split('=') for kv in sys.argv[3:])
    open(out, 'w').write(G(mode, opts).build())
```
